```python
import torch

def _softmax(x, axis=-1):
    return torch.softmax(x, dim=axis)
def _gelu(x):
    return torch.nn.functional.gelu(x, approximate="tanh")
def _silu(x):
    return torch.nn.functional.silu(x)
def _sigmoid(x):
    return torch.sigmoid(x)
def _layernorm(x, axis=-1, eps=1e-5):
    m = x.mean(dim=axis, keepdim=True)
    v = x.var(dim=axis, keepdim=True, unbiased=False)
    return (x - m) / torch.sqrt(v + eps)
def _scatter_add(tgt, idx, src, axis=0):
    return tgt.clone().index_add_(axis, idx, src)
def _segment_sum(src, seg, n):
    out = torch.zeros((n,) + src.shape[1:], dtype=src.dtype)
    return out.index_add_(0, seg, src)
def _pad(x, pw):
    flat = tuple(v for pair in reversed(pw) for v in pair)
    return torch.nn.functional.pad(x, flat)

kernel_name = 'recurrent_scan__spectral_fnet__mixer_s_mlp__prompt'

def setup_inputs():

    _w = (lambda a: (lambda t: t.to(torch.bfloat16) if t.is_floating_point() else t)(torch.as_tensor(a)))
    def _A_setup():
        B, S, D = 1, 2048, 512
        ns = torch.arange(S)[:, None] * torch.arange(S)[None, :]
        nd = torch.arange(D)[:, None] * torch.arange(D)[None, :]
        Ws_re = torch.cos(-2.0 * torch.pi * ns / S).to(float)
        Ws_im = torch.sin(-2.0 * torch.pi * ns / S).to(float)
        Wd_re = torch.cos(-2.0 * torch.pi * nd / D).to(float)
        Wd_im = torch.sin(-2.0 * torch.pi * nd / D).to(float)
        return {
            "x": _w((lambda *s: torch.randn(*s, dtype=torch.bfloat16) * 0.05)(B, S, D)),
            "dft_seq_re": _w(Ws_re),
            "dft_seq_im": _w(Ws_im),
            "dft_hid_re": _w(Wd_re),
            "dft_hid_im": _w(Wd_im),
        }
    _A_in = _A_setup()

    def _B_setup():
        B, S, D, F = 1, 2048, 512, 1376
        return {
            "x":  _w((lambda *s: torch.randn(*s, dtype=torch.bfloat16) * 0.05)(B, S, D)),
            "w1": _w((lambda *s: torch.randn(*s, dtype=torch.bfloat16) * 3.2)(D, D) * (D ** -0.5)),
            "w2": _w((lambda *s: torch.randn(*s, dtype=torch.bfloat16) * 3.2)(D, D) * (D ** -0.5)),
            "w3": _w((lambda *s: torch.randn(*s, dtype=torch.bfloat16) * 3.2)(D, F) * (D ** -0.5)),
            "w4": _w((lambda *s: torch.randn(*s, dtype=torch.bfloat16) * 3.2)(F, D) * (F ** -0.5)),
        }
    _B_in = _B_setup()

    return {
        "A_x": _A_in["x"],
        "A_dft_seq_re": _A_in["dft_seq_re"],
        "A_dft_seq_im": _A_in["dft_seq_im"],
        "A_dft_hid_re": _A_in["dft_hid_re"],
        "A_dft_hid_im": _A_in["dft_hid_im"],
        "B_x": _B_in["x"],
        "B_w1": _B_in["w1"],
        "B_w2": _B_in["w2"],
        "B_w3": _B_in["w3"],
        "B_w4": _B_in["w4"],
    }

def reference(A_x, A_dft_seq_re, A_dft_seq_im, A_dft_hid_re, A_dft_hid_im, B_x, B_w1, B_w2, B_w3, B_w4):
    def _A_ref(x, dft_seq_re, dft_seq_im, dft_hid_re, dft_hid_im):
        a = torch.einsum("bsd,ed->bse", x, dft_hid_re)
        b = torch.einsum("bsd,ed->bse", x, dft_hid_im)
        y = torch.einsum("ts,bse->bte", dft_seq_re, a) - torch.einsum("ts,bse->bte", dft_seq_im, b)
        return y

    def _B_ref(x, w1, w2, w3, w4):
        B, S, D = x.shape
        h = _gelu(_layernorm(x, axis=-1) @ w1)
        c = D // 4
        g0 = _pad(h[:, :, 0*c:1*c], ((0, 0), (1, 0), (0, 0)))[:, :S, :]
        g1 = _pad(h[:, :, 1*c:2*c], ((0, 0), (0, 1), (0, 0)))[:, 1:, :]
        g2 = _pad(h[:, :, 2*c:3*c], ((0, 0), (2, 0), (0, 0)))[:, :S, :]
        g3 = _pad(h[:, :, 3*c:   ], ((0, 0), (0, 2), (0, 0)))[:, 2:, :]
        hs = torch.concatenate([g0, g1, g2, g3], axis=-1) @ w2
        x1 = x + hs
        h2 = _gelu(_layernorm(x1, axis=-1) @ w3) @ w4
        return x1 + h2

    x = A_x
    xn = _layernorm(x, axis=-1)
    s = _A_ref(xn, A_dft_seq_re, A_dft_seq_im, A_dft_hid_re, A_dft_hid_im)
    g = _silu(_B_ref(xn, B_w1, B_w2, B_w3, B_w4))
    return x + s * g
```

```python
import re

TRANS = ('v_exp_f32', 'v_log_f32', 'v_rcp_f32', 'v_rsq_f32', 'v_sqrt_f32', 'v_sin_f32', 'v_cos_f32')
_REG = re.compile(r'^-?\|?(?:abs\()?([vas])(?:(\d+)|\[(\d+):(\d+)\])\)?\|?$')


def regs_of(op):
    op = op.strip()
    m = _REG.match(op)
    if m:
        k = m.group(1)
        if m.group(2) is not None:
            return [(k, int(m.group(2)))]
        return [(k, i) for i in range(int(m.group(3)), int(m.group(4)) + 1)]
    if op == 'vcc':
        return [('s', 'vcc')]
    if op in ('exec', 'exec_lo', 'exec_hi'):
        return [('s', 'exec')]
    if op == 'm0':
        return [('s', 'm0')]
    return []


class Ins:
    __slots__ = ('text', 'mn', 'dst', 'src', 'cls', 'srcC', 'passes', 'optional', 'data', 'label', 'target')

    def __init__(self, text, optional=False):
        self.text = text
        self.optional = optional
        self.label = None
        self.target = None
        self.srcC = []
        self.passes = 0
        self.data = []
        self.dst = []
        self.src = []
        t = text.split(';')[0].strip()
        if t.endswith(':'):
            self.mn = 'label'
            self.cls = 'label'
            self.label = t[:-1]
            return
        if t.startswith('.'):
            self.mn = 'dir'
            self.cls = 'label'
            return
        parts = t.split(None, 1)
        mn = parts[0]
        for suf in ('_e32', '_e64'):
            if mn.endswith(suf):
                mn = mn[:-4]
        self.mn = mn
        ops = []
        if len(parts) > 1:
            cur = ''
            depth = 0
            for ch in parts[1]:
                if ch in '[(':
                    depth += 1
                if ch in '])':
                    depth -= 1
                if ch == ',' and depth == 0:
                    ops.append(cur.strip())
                    cur = ''
                else:
                    cur += ch
            ops.append(cur.strip())
            last = ops[-1].split()
            mods = last[1:] if last else []
            ops[-1] = last[0] if last else ''
        else:
            mods = []
        R = [regs_of(o) for o in ops]
        flat = lambda L: [x for y in L for x in y]
        if mn.startswith('v_mfma'):
            self.cls = 'mfma'
            self.dst = R[0]
            self.src = R[1] + R[2] + R[3]
            self.srcC = R[3]
            self.passes = 8 if '32x32' in mn else 4
        elif mn.startswith('v_'):
            self.cls = 'valu'
            if mn.startswith('v_permlane'):
                self.dst = R[0] + R[1]
                self.src = R[0] + R[1]
            elif mn.startswith('v_cmp') or mn in ('v_readfirstlane_b32', 'v_readlane_b32'):
                self.dst = R[0]
                self.src = flat(R[1:])
            elif mn in ('v_fmac_f32', 'v_dot2c_f32_bf16', 'v_writelane_b32'):
                self.dst = R[0]
                self.src = flat(R)
            elif mn in ('v_add_co_u32', 'v_sub_co_u32', 'v_addc_co_u32'):
                self.dst = R[0] + R[1]
                self.src = flat(R[2:])
            elif mn == 'v_nop':
                pass
            else:
                self.dst = R[0]
                self.src = flat(R[1:])
            if any(m.startswith(('row_', 'quad_perm', 'wave_')) for m in mods):
                self.cls = 'dpp'
                self.src = self.src + self.dst
        elif mn.startswith('buffer_load'):
            if 'lds' in mods:
                self.cls = 'dma'
                self.src = flat(R) + [('s', 'm0')]
            else:
                self.cls = 'vload'
                self.dst = R[0]
                self.src = flat(R[1:])
        elif mn.startswith('buffer_store') or mn.startswith('buffer_atomic'):
            self.cls = 'vstore'
            self.src = flat(R)
            self.data = R[0]
        elif mn.startswith('ds_read'):
            self.cls = 'dsread'
            self.dst = R[0]
            self.src = flat(R[1:])
        elif mn.startswith('ds_write') or mn.startswith('ds_add'):
            self.cls = 'dswrite'
            self.src = flat(R)
        elif mn.startswith('s_load') or mn in ('s_memtime', 's_memrealtime'):
            self.cls = 'smem'
            self.dst = R[0]
            self.src = flat(R[1:])
        elif mn in ('s_waitcnt', 's_barrier', 's_nop', 's_endpgm', 's_setprio', 's_sleep'):
            self.cls = 'misc'
        elif mn.startswith('s_cbranch') or mn == 's_branch':
            self.cls = 'branch'
            self.target = ops[0]
        elif mn.startswith('s_cmp') or mn.startswith('s_bitcmp'):
            self.cls = 'salu'
            self.src = flat(R)
        elif mn.startswith('s_'):
            self.cls = 'salu'
            self.dst = R[0]
            self.src = flat(R[1:])
            if mn.endswith('saveexec_b64'):
                self.dst = self.dst + [('s', 'exec')]
        else:
            raise ValueError('unknown instruction: ' + text)

    def ws(self):
        if self.cls == 'label':
            return 0
        if self.mn == 's_nop':
            return int(self.text.split()[1]) + 1
        return 1


def is_valu(i):
    return i.cls in ('valu', 'dpp')


def need(p, c):
    n = 0
    ov = lambda a, b: bool(set(a) & set(b))
    vg = lambda L: [x for x in L if x[0] in 'va']
    sg = lambda L: [x for x in L if x[0] == 's']
    if is_valu(p):
        pv = vg(p.dst)
        if c.cls == 'mfma' and ov(pv, c.src):
            n = max(n, 2)
        if c.mn.startswith('v_permlane') and ov(pv, c.src):
            n = max(n, 2)
        if c.cls == 'dpp' and ov(pv, c.src):
            n = max(n, 2)
        if c.mn in ('v_readfirstlane_b32', 'v_readlane_b32') and ov(pv, c.src):
            n = max(n, 1)
        if p.mn in TRANS and is_valu(c) and ov(pv, c.src):
            n = max(n, 1)
        if p.mn.startswith('v_dot2'):
            if is_valu(c) or c.cls == 'mfma':
                if c.mn == p.mn:
                    ab = c.src[len(c.dst):] if c.mn == 'v_dot2c_f32_bf16' else c.src
                    if ov(pv, ab):
                        n = max(n, 3)
                elif ov(pv, c.src) or ov(pv, c.dst):
                    n = max(n, 3)
        ps = [x for x in sg(p.dst)]
        if ps:
            if is_valu(c) and (ov(ps, c.src) or (c.mn.startswith('v_cndmask') and ('s', 'vcc') in ps)):
                n = max(n, 2)
            if c.cls in ('dma', 'vload', 'vstore') and ov(ps, c.src):
                n = max(n, 5)
            if c.cls in ('salu', 'smem') and ov(ps, c.src):
                n = max(n, 2)
    if p.cls == 'mfma':
        big = p.passes == 8
        if c.cls == 'mfma':
            if ov(p.dst, c.srcC):
                if not (p.dst == c.srcC and p.passes == c.passes):
                    n = max(n, 10 if big else 6)
            ab = c.src[:len(c.src) - len(c.srcC)]
            if ov(p.dst, ab):
                n = max(n, 12 if big else 8)
            if ov(p.dst, c.dst) and not (p.dst == c.srcC and p.passes == c.passes):
                n = max(n, 12 if big else 8)
        else:
            if ov(p.dst, c.src) or ov(p.dst, c.dst):
                n = max(n, 12 if big else 8)
            if ov(p.srcC, c.dst):
                n = max(n, 7 if big else 3)
    if p.cls == 'salu' and ('s', 'm0') in p.dst and c.cls == 'dma':
        n = max(n, 1)
    if p.cls == 'vstore' and len(p.data) >= 3 and ov(p.data, c.dst):
        n = max(n, 2)
    return n


class Prog:
    def __init__(self):
        self.ins = []
        self.nlab = 0
        self.vm_issued = 0
        self.lg_issued = 0
        self.vm_out = 0
        self.lg_out = 0

    def label(self, base='L'):
        self.nlab += 1
        return f"{base}_{self.nlab}"

    def __call__(self, text, optional=False):
        tok = None
        for x in text.split('\n'):
            x = x.strip()
            if not x or x.startswith(';'):
                continue
            i = Ins(x, optional)
            if i.cls in ('dsread', 'dswrite'):
                if self.lg_out >= 15:
                    self.ins.append(Ins("s_waitcnt lgkmcnt(14)"))
                    self.lg_out = 14
                self.lg_out += 1
            elif i.cls in ('dma', 'vload', 'vstore'):
                if self.vm_out >= 63:
                    self.ins.append(Ins("s_waitcnt vmcnt(62)"))
                    self.vm_out = 62
                self.vm_out += 1
            elif i.mn == 's_waitcnt':
                m = re.search(r'vmcnt\((\d+)\)', x)
                if m:
                    self.vm_out = min(self.vm_out, int(m.group(1)))
                m = re.search(r'lgkmcnt\((\d+)\)', x)
                if m:
                    self.lg_out = min(self.lg_out, int(m.group(1)))
            self.ins.append(i)
            if i.cls in ('dma', 'vload', 'vstore'):
                if not optional:
                    self.vm_issued += 1
                tok = ('vm', self.vm_issued)
            elif i.cls in ('dsread', 'dswrite'):
                if not optional:
                    self.lg_issued += 1
                tok = ('lg', self.lg_issued)
        return tok

    def emit(self, items):
        for it in items:
            if callable(it):
                it(self)
            else:
                self(it)

    def wait(self, *toks):
        vm = [t[1] for t in toks if t and t[0] == 'vm']
        lg = [t[1] for t in toks if t and t[0] == 'lg']
        s = []
        if vm:
            s.append(f"vmcnt({min(63, self.vm_issued - max(vm))})")
        if lg:
            s.append(f"lgkmcnt({min(15, self.lg_issued - max(lg))})")
        if s:
            self("s_waitcnt " + " ".join(s))

    def vm_tok(self):
        return ('vm', self.vm_issued)

    def lg_tok(self):
        return ('lg', self.lg_issued)

    def pad_hazards(self):
        out = []
        labels_ahead = {}
        for k, i in enumerate(self.ins):
            if i.cls == 'label' and i.label:
                labels_ahead[i.label] = k
        skip_of = []
        open_skips = []
        closed = set()
        npad = 0
        for k, c in enumerate(self.ins):
            if c.cls == 'label' and c.label:
                for s in [s for s in open_skips if s[0] == c.label]:
                    closed.add(s[1])
                open_skips = [s for s in open_skips if s[0] != c.label]
            if c.cls != 'label':
                req = 0
                dist = 0
                j = len(out) - 1
                while j >= 0 and dist < 20:
                    p = out[j]
                    n = need(p, c)
                    if n > dist:
                        req = max(req, n - dist)
                    if not any(b in closed for b in skip_of[j]):
                        dist += p.ws()
                    j -= 1
                if req:
                    npad += 1
                    out.append(Ins(f"s_nop {req - 1}"))
                    skip_of.append([s[1] for s in open_skips])
            out.append(c)
            skip_of.append([s[1] for s in open_skips])
            if c.cls == 'branch' and labels_ahead.get(c.target, -1) > k:
                open_skips.append((c.target, len(out) - 1))
        self.ins = out
        return npad

    def check_waits(self):
        vm, lg, sm = [], [], []
        errs = []
        for k, i in enumerate(self.ins):
            if i.cls == 'label':
                continue
            if i.mn == 's_waitcnt':
                m = re.search(r'vmcnt\((\d+)\)', i.text)
                if m:
                    n = int(m.group(1))
                    while sum(1 for x in vm[1:] if not x[1]) >= n and vm:
                        vm.pop(0)
                    if n == 0:
                        vm = []
                m = re.search(r'lgkmcnt\((\d+)\)', i.text)
                if m:
                    n = int(m.group(1))
                    while sum(1 for x in lg[1:] if not x[1]) >= n and lg:
                        lg.pop(0)
                    if n == 0:
                        lg = []
                        sm = []
                continue
            touched = set(i.src) | set(i.dst)
            for q, nm in ((vm, 'vm'), (lg, 'lg'), (sm, 'sm')):
                for d, _, txt in q:
                    if touched & d:
                        errs.append(f"[{k}] '{i.text}' touches {sorted(touched & d)[:3]} of outstanding {nm} '{txt}'")
            if i.cls in ('vload', 'dma', 'vstore'):
                vm.append((set(i.dst), i.optional, i.text))
            elif i.cls in ('dsread', 'dswrite'):
                lg.append((set(i.dst), i.optional, i.text))
            elif i.cls == 'smem' and i.mn.startswith('s_load'):
                sm.append((set(i.dst), False, i.text))
        return errs

    def text(self):
        return '\n'.join((i.text if i.cls == 'label' else '    ' + i.text) for i in self.ins) + '\n'


class Alloc:
    def __init__(self, kind, n, start=0):
        self.kind = kind
        self.free = [True] * n
        for i in range(start):
            self.free[i] = False
        self.hi = start
        self.names = {}

    def get(self, n=1, align=None, name=None):
        if align is None:
            align = 1 if n == 1 else (2 if n < 4 else 4)
        for b in range(0, len(self.free) - n + 1, align):
            if all(self.free[b:b + n]):
                for i in range(b, b + n):
                    self.free[i] = False
                self.hi = max(self.hi, b + n)
                return R(self.kind, b, n)
        raise RuntimeError(f"out of {self.kind} registers for {n} ({name}); free={sum(self.free)}")

    def put(self, *rs):
        for r in rs:
            for i in range(r.b, r.b + r.n):
                assert not self.free[i], "double free"
                self.free[i] = True


class R:
    def __init__(self, kind, b, n):
        self.kind, self.b, self.n = kind, b, n

    def __getitem__(self, k):
        if isinstance(k, slice):
            a = k.start or 0
            z = self.n if k.stop is None else k.stop
            assert 0 <= a < z <= self.n, (a, z, self.n)
            return R(self.kind, self.b + a, z - a)
        assert 0 <= k < self.n, (k, self.n)
        return R(self.kind, self.b + k, 1)

    def __str__(self):
        return f"{self.kind}{self.b}" if self.n == 1 else f"{self.kind}[{self.b}:{self.b + self.n - 1}]"

    __repr__ = __str__

    def __format__(self, spec):
        return str(self)


def interleave(main, filler, lead=0):
    out = []
    n = len(main) - lead
    done = 0
    for k, m in enumerate(main):
        out.append(m)
        if k >= lead:
            want = (len(filler) * (k - lead + 1)) // n
            out.extend(filler[done:want])
            done = want
    out.extend(filler[done:])
    return out
```

```python
import sys, math, struct
from kg import *

KNAME = "recurrent_scan__spectral_fnet__mixer_s_mlp__prompt_kernel"


def f2u(x):
    return struct.unpack('<I', struct.pack('<f', x))[0]


def hx(x):
    return hex(f2u(x))


E_OFF = 0
FH, FX, FH2, FA, FY, XID = 0x1000, 0x2000, 0x3000, 0x4000, 0x5000, 0x6000
STATS = 0x10000
HS, X1, H2, AT, YT, TS = 0x100000, 0x300000, 0x500000, 0xB00000, 0xD00000, 0x1000000
H2G = 172 * 1024
WS_BYTES = 0x10000000
R0, R1, R2 = 0, 65536, 131072
TIMG, EX = 147456, 156672
P0B, ZA = 131072, 151552
CS1, SM, SR, CS3 = 161792, 162048, 162336, 162624
RED = P0B
LDS_BYTES = 163840
SPIN = 60000


def build(opt):
    prof = opt.get('prof', [])
    P = Prog()
    V = Alloc('v', 256, 1)
    A = Alloc('a', 256)
    S = Alloc('s', 102, 40)
    sX, sW1, sW2, sW3, sW4, sWD, sWS, sOUT = [R('s', 4 + 4 * i, 4) for i in range(8)]
    sHID = R('s', 36, 4)
    v0 = R('v', 0, 1)
    stamps = []

    def stamp(name):
        if name in prof or 'all' in prof:
            r = S.get(2, 2)
            stamps.append((name, r))
            P(f"s_memrealtime {r}")

    ST = 'sc1'

    sW, sG, sJ, sSH, sC, sNZ = [S.get() for _ in range(6)]
    sNN = S.get(2, 2)
    sInv = S.get(2, 2)
    sFl = S.get(16, 4)
    t0, t1, t2, t3 = [S.get() for _ in range(4)]
    sOnes = S.get()
    stamp('entry')
    P(f"""
    s_cmp_ge_u32 s2, 256
    s_cbranch_scc1 L_end
    s_load_dwordx2 {sX[0:2]}, s[0:1], 0
    s_load_dwordx2 {sW1[0:2]}, s[0:1], 48
    s_load_dwordx2 {sWS[0:2]}, s[0:1], 96
    s_load_dwordx4 {sHID}, s[0:1], 24
    """)
    vt = [V.get() for _ in range(8)]
    vL16, vLo4, vHi2 = V.get(), V.get(), V.get()
    P(f"""
    v_lshrrev_b32 {vt[0]}, 6, {v0}
    v_and_b32 {v0}, 63, {v0}
    s_and_b32 {t0}, s2, 7
    v_readfirstlane_b32 {sW}, {vt[0]}
    s_lshr_b32 {t1}, s2, 3
    s_lshl_b32 {t0}, {t0}, 2
    s_lshr_b32 {t2}, {t1}, 3
    s_add_u32 {sG}, {t0}, {t2}
    s_and_b32 {sJ}, {t1}, 7
    v_lshlrev_b32 {vL16}, 4, {v0}
    s_lshr_b32 {t0}, {sJ}, 2
    s_add_u32 {t0}, {t0}, 1
    s_sub_u32 {t1}, 0, {t0}
    s_bitcmp1_b32 {sJ}, 1
    s_cselect_b32 {sSH}, {t1}, {t0}
    s_mov_b32 {sX[2]}, {2048 * 1024}
    s_mov_b32 {sX[3]}, 0x20000
    s_mov_b32 {sW1[2]}, {512 * 1024}
    s_mov_b32 {sW1[3]}, 0x20000
    s_mov_b32 {sWS[2]}, {WS_BYTES}
    s_mov_b32 {sWS[3]}, 0x20000
    s_mov_b32 {sWD[2]}, {512 * 1024}
    s_mov_b32 {sWD[3]}, 0x20000
    """)
    sT0 = S.get()
    P(f"""
    s_lshl_b32 {sT0}, {sG}, 6
    s_sub_u32 {sT0}, {sT0}, {sSH}
    s_lshl_b32 {t0}, {sW}, 4
    s_add_u32 {sT0}, {sT0}, {t0}
    s_lshl_b32 {t3}, {sW}, 14
    s_mov_b32 m0, {t3}
    s_and_b32 {t1}, {sT0}, 2047
    s_lshl_b32 {t1}, {t1}, 10
    v_and_b32 {vLo4}, 15, {v0}
    v_lshrrev_b32 {vHi2}, 4, {v0}
    s_waitcnt lgkmcnt(0)
    """)
    stamp('kernarg')
    main = []
    for rho in range(16):
        L = []
        va = vt[rho % 2]
        if rho == 0:
            L.append(f"buffer_load_dwordx4 {vL16}, {sX}, {t1} offen lds")
        elif rho < 4 or rho >= 12:
            L.append(f"s_add_u32 m0, {t3}, {rho * 1024}\ns_add_u32 {t1}, {sT0}, {rho}\ns_and_b32 {t1}, {t1}, 2047\ns_lshl_b32 {t1}, {t1}, 10")
            L.append(f"v_xor_b32 {va}, {rho * 16}, {vL16}\nbuffer_load_dwordx4 {va}, {sX}, {t1} offen lds")
        else:
            if rho % 4 == 0:
                L.append(f"s_add_u32 m0, {t3}, {rho * 1024}\ns_add_u32 {t1}, {sT0}, {rho}\ns_lshl_b32 {t1}, {t1}, 10")
            L.append(f"v_xor_b32 {va}, {rho * 16}, {vL16}\nbuffer_load_dwordx4 {va}, {sX}, {t1} offen offset:{(rho % 4) * 1024} lds")
        main.append('\n'.join(L))
    P.emit(main[:8])
    P(f"""
    s_load_dwordx2 {sW2[0:2]}, s[0:1], 56
    s_load_dwordx2 {sW3[0:2]}, s[0:1], 64
    s_load_dwordx2 {sW4[0:2]}, s[0:1], 72
    s_load_dwordx2 {sOUT[0:2]}, s[0:1], 80
    s_load_dword {sNN[0]}, {sWS[0:2]}, {E_OFF}
    s_bitcmp1_b32 {sW}, 0
    s_cselect_b32 {sWD[0]}, {sHID[2]}, {sHID[0]}
    s_cselect_b32 {sWD[1]}, {sHID[3]}, {sHID[1]}
    """)
    main = main[8:]
    sOE = S.get()
    main.append(f"""
    s_cmp_gt_i32 {sSH}, 0
    s_cselect_b32 {sOE}, 64, -2
    s_and_b32 {t0}, {sW}, 1
    s_add_u32 {sOE}, {sOE}, {t0}
    s_lshl_b32 {t0}, {t0}, 10
    s_add_u32 m0, {t0}, {EX}
    s_lshl_b32 {t1}, {sG}, 6
    s_sub_u32 {t1}, {t1}, {sSH}
    s_add_u32 {t1}, {t1}, {sOE}
    s_and_b32 {t1}, {t1}, 2047
    s_lshl_b32 {t1}, {t1}, 10
    s_and_b32 {t0}, {sOE}, 15
    s_lshl_b32 {t0}, {t0}, 4
    v_xor_b32 {vt[0]}, {t0}, {vL16}
    buffer_load_dwordx4 {vt[0]}, {sX}, {t1} offen lds""")
    tok = {}
    main.append(lambda p: tok.__setitem__('x', p.vm_tok()))
    vWq = V.get(4)
    vPat = V.get()
    vR64 = V.get()
    main.append(f"""
    v_lshrrev_b32 {vt[2]}, 5, {v0}
    v_bfe_u32 {vt[3]}, {v0}, 2, 2
    v_lshl_add_u32 {vPat}, {vt[2]}, 2, {vt[3]}
    v_lshlrev_b32 {vR64}, 6, {vt[3]}
    v_and_b32 {vt[2]}, 1, {vHi2}
    v_lshlrev_b32 {vt[2]}, 6, {vt[2]}
    v_and_b32 {vt[3]}, 3, {v0}
    v_lshl_add_u32 {vt[2]}, {vt[3]}, 4, {vt[2]}
    v_lshl_add_u32 {vWq[0]}, {vPat}, 10, {vt[2]}
    v_xor_b32 {vWq[1]}, 16, {vWq[0]}
    v_add_u32 {vWq[1]}, 7168, {vWq[1]}
    v_add_u32 {vWq[2]}, {2 * 7168}, {vWq[0]}
    v_add_u32 {vWq[3]}, {2 * 7168}, {vWq[1]}""")
    sJ128 = S.get()

    def wtile_dma(srd, ldsbase, key):
        L = []
        for ch in range(4):
            if ch == 0:
                pre = f"""s_lshl_b32 {sJ128}, {sJ}, 7
                s_lshl_b32 {t1}, {sW}, 15
                s_add_u32 {t1}, {t1}, {sJ128}
                s_lshl_b32 {t0}, {sW}, 12
                s_add_u32 m0, {t0}, {ldsbase}
                """
            else:
                pre = f"s_add_u32 m0, m0, 16384\ns_add_u32 {t1}, {t1}, {4 * 32768}\n"
            for q in range(4):
                L.append((pre if q == 0 else '') + f"buffer_load_dwordx4 {vWq[q]}, {srd}, {t1} offen offset:{q * 1024} lds")
            L.append(lambda p, ch=ch: tok.__setitem__((key, ch), p.vm_tok()))
        return L
    main += wtile_dma(sW1, R1, 'w1')
    main.append(f"""
    v_xor_b32 {vt[2]}, {vLo4}, {vHi2}
    v_lshlrev_b32 {vt[2]}, 4, {vt[2]}
    v_lshl_add_u32 {vt[2]}, {vHi2}, 11, {vt[2]}
    s_cmp_lt_u32 {sW}, 2
    s_cselect_b32 {t0}, 2, 1
    s_lshl_b32 {t1}, {sJ}, 5
    s_add_u32 {t1}, {t1}, {t0}
    s_lshl_b32 {t1}, {t1}, 10
    s_lshl_b32 {t0}, {sW}, 12
    s_add_u32 m0, {t0}, {R2}
    s_nop 0
    buffer_load_dwordx4 {vt[2]}, {sWD}, {t1} offen lds""")
    for i in range(1, 4):
        main.append(f"""v_xor_b32 {vt[i % 2]}, {64 * i}, {vt[2]}
        v_add_u32 {vt[i % 2]}, {7168 * i}, {vt[i % 2]}
        buffer_load_dwordx4 {vt[i % 2]}, {sWD}, {t1} offen offset:{i * 1024} lds""")
    main.append(lambda p: tok.__setitem__('wd', p.vm_tok()))

    aF32 = A.get(16)
    aF64 = A.get(64)
    vTW = V.get(32)
    sEps = S.get()
    cg = []
    g0, g1, g2, g3 = [V.get() for _ in range(4)]
    gc, gs = V.get(8), V.get(8)
    gp = V.get(4)
    cg += f"""s_and_b32 {sEps}, {sW}, 1
    s_lshl_b32 {sEps}, {sEps}, 4
    v_add_u32 {g0}, {sEps}, {vLo4}
    s_lshr_b32 {sEps}, {sW}, 1
    s_mul_i32 {sEps}, {sEps}, 0x80008000
    v_cvt_f32_u32 {g0}, {g0}
    v_lshrrev_b32 {g1}, 1, {vHi2}
    v_and_b32 {g2}, 1, {vHi2}
    v_lshlrev_b32 {g1}, 4, {g1}
    v_lshl_add_u32 {g1}, {g2}, 2, {g1}
    v_cvt_f32_u32 {g1}, {g1}
    v_mul_f32 {g2}, {hx(1 / 2048)}, {g0}""".split('\n')
    for beta in range(4):
        off = 32 * (beta >> 1) + 8 * (beta & 1)
        for i in range(4):
            cg += [f"v_add_f32 {g3}, {hx(off + i)}, {g1}", f"v_mul_f32 {g3}, {g3}, {g2}",
                   f"v_cos_f32 {vTW[4 * beta + i]}, {g3}", f"v_sin_f32 {vTW[16 + 4 * beta + i]}, {g3}"]
    cg += [f"v_lshlrev_b32 {g3}, 3, {vHi2}", f"v_cvt_f32_u32 {g3}, {g3}", f"v_mul_f32 {g2}, {hx(1 / 32)}, {g0}"]
    for jj in range(8):
        cg += [f"v_add_f32 {g0}, {hx(jj)}, {g3}", f"v_mul_f32 {g0}, {g0}, {g2}", f"v_fract_f32 {g0}, {g0}",
               f"v_cos_f32 {gc[jj]}, {g0}", f"v_sin_f32 {gs[jj]}, {g0}"]
    for d in range(4):
        cg += [f"v_cvt_pk_bf16_f32 {gp[0]}, {gc[2 * d]}, {gc[2 * d + 1]}",
               f"v_cvt_pk_bf16_f32 {gp[1]}, {gs[2 * d]}, {gs[2 * d + 1]}",
               f"v_accvgpr_write_b32 {aF32[d]}, {gp[0]}",
               f"v_xor_b32 {gp[2]}, {sEps}, {gp[1]}",
               f"v_xor_b32 {gp[0]}, {sEps}, {gp[0]}",
               f"v_xor_b32 {gp[1]}, 0x80008000, {gp[1]}",
               f"v_accvgpr_write_b32 {aF32[4 + d]}, {gp[2]}",
               f"v_accvgpr_write_b32 {aF32[8 + d]}, {gp[0]}",
               f"v_accvgpr_write_b32 {aF32[12 + d]}, {gp[1]}"]
    cg += [f"v_cvt_f32_u32 {g2}, {vLo4}", f"v_mul_f32 {g2}, {hx(1 / 64)}, {g2}"]
    for beta in range(4):
        off = 32 * (beta >> 1) + 8 * (beta & 1)
        for i in range(4):
            cg += [f"v_add_f32 {g0}, {hx(off + i)}, {g1}", f"v_mul_f32 {g0}, {g0}, {g2}", f"v_fract_f32 {g0}, {g0}",
                   f"v_cos_f32 {gc[i]}, {g0}", f"v_sin_f32 {gs[i]}, {g0}"]
        for tau in range(4):
            def cs(i, kind):
                n = (i * tau) % 4
                c, s = gc[i], gs[i]
                return ([f"{c}", f"-{s}", f"-{c}", f"{s}"] if kind == 'c' else [f"{s}", f"{c}", f"-{s}", f"-{c}"])[n]
            base = 16 * beta + 4 * tau
            for d, (kind, i) in enumerate((('c', 0), ('c', 2), ('s', 0), ('s', 2))):
                cg.append(f"v_cvt_pk_bf16_f32 {gp[d]}, {cs(i, kind)}, {cs(i + 1, kind)}")
            for d in range(4):
                cg.append(f"v_accvgpr_write_b32 {aF64[base + d]}, {gp[d]}")
    P.emit(interleave(main, cg, lead=2))
    V.put(g0, g1, g2, g3, gc, gs, gp)
    stamp('issued')
    sE, sG2 = S.get(), S.get()
    P(f"""
    s_waitcnt lgkmcnt(0)
    s_add_u32 {sNN[0]}, {sNN[0]}, 1
    s_mov_b32 {sNN[1]}, {sNN[0]}
    s_mov_b32 {sW2[2]}, {512 * 1024}
    s_mov_b32 {sW2[3]}, 0x20000
    s_mov_b32 {sW3[2]}, {512 * 2752}
    s_mov_b32 {sW3[3]}, 0x20000
    s_mov_b32 {sW4[2]}, {1376 * 1024}
    s_mov_b32 {sW4[3]}, 0x20000
    s_mov_b32 {sOUT[2]}, {2048 * 1024}
    s_mov_b32 {sOUT[3]}, 0x20000
    s_mov_b32 {sOnes}, 0x3f803f80
    s_lshr_b32 {sG2}, {sG}, 1
    s_and_b32 {t0}, {sG}, 1
    s_lshl_b32 {t0}, {t0}, 3
    s_add_u32 {sC}, {t0}, {sJ}
    s_lshl_b32 {sE}, {sJ}, 5
    s_add_u32 {sE}, {sE}, {sG}
    s_add_u32 {sE}, {sE}, 1
    """)
    vDummy = V.get()
    if opt.get('warm', 1):
        la, lb, lc, ld = [P.label('L_warm') for _ in range(4)]
        P(f"""
        v_lshlrev_b32 {vt[0]}, 7, {v0}
        s_mul_i32 {t1}, s2, {43 * 128}
        s_cmp_eq_u32 {sW}, 0
        s_cbranch_scc0 {la}
        s_lshl_b32 {t1}, s2, 11
        s_mov_b64 exec, 0xffff
        """)
        P(f"buffer_load_dword {vDummy}, {vt[0]}, {sW2}, {t1} offen", optional=True)
        P(f"""s_branch {ld}
        {la}:
        s_mov_b32 exec_hi, 0x7ff
        s_cmp_eq_u32 {sW}, 1
        s_cbranch_scc0 {lb}""")
        P(f"buffer_load_dword {vDummy}, {vt[0]}, {sW3}, {t1} offen", optional=True)
        P(f"""s_branch {ld}
        {lb}:
        s_cmp_eq_u32 {sW}, 2
        s_cbranch_scc0 {lc}""")
        P(f"buffer_load_dword {vDummy}, {vt[0]}, {sW4}, {t1} offen", optional=True)
        P(f"""s_branch {ld}
        {lc}:
        s_mov_b64 exec, 0x3f
        v_lshlrev_b32 {vt[0]}, 12, {v0}
        s_and_b32 {t1}, s2, 31
        s_lshl_b32 {t1}, {t1}, 7
        s_add_u32 {t1}, {t1}, {FH}""")
        P(f"buffer_load_dword {vDummy}, {vt[0]}, {sWS}, {t1} offen sc1")
        P(f"{ld}:\ns_mov_b64 exec, -1")

    vX = V.get(64)
    vEx = V.get(4)
    vA0 = V.get(4)
    P(f"""
    v_xor_b32 {vt[0]}, {vHi2}, {vLo4}
    v_lshlrev_b32 {vt[0]}, 4, {vt[0]}
    v_lshl_add_u32 {vt[0]}, {vLo4}, 10, {vt[0]}
    v_add_u32 {vA0[0]}, {t3}, {vt[0]}
    v_xor_b32 {vA0[1]}, 64, {vA0[0]}
    v_xor_b32 {vA0[2]}, 128, {vA0[0]}
    v_xor_b32 {vA0[3]}, 192, {vA0[0]}
    s_and_b32 {t0}, {sW}, 1
    s_lshl_b32 {t0}, {t0}, 10
    s_add_u32 {t0}, {t0}, {EX}
    v_add_u32 {vt[1]}, {t0}, {vL16}
    """)
    P(f"""
    v_add_u32 {vt[2]}, {sT0}, {vLo4}
    v_cmp_lt_u32 {sInv}, 2047, {vt[2]}""".replace("2047, ", "vcc_lo, ") if False else f"""
    v_add_u32 {vt[2]}, {sT0}, {vLo4}
    v_cmp_lt_u32 vcc, 2047, {vt[2]}
    s_mov_b64 {sInv}, vcc""")
    ss = V.get(2); qq = V.get(2); es = V.get(); eq = V.get()
    P(f"""
    v_mov_b32 {ss[0]}, 0
    v_mov_b32 {ss[1]}, 0
    v_mov_b32 {qq[0]}, 0
    v_mov_b32 {qq[1]}, 0
    v_mov_b32 {es}, 0
    v_mov_b32 {eq}, 0""")
    P.wait(tok['x'])
    stamp('x_landed')
    xt = []
    for k in range(16):
        xt.append(P(f"ds_read_b128 {vX[4 * k:4 * k + 4]}, {vA0[k % 4]} offset:{256 * (k // 4)}"))
        if k == 11:
            pass
    te = P(f"ds_read_b128 {vEx}, {vt[1]}")
    for k in range(16):
        P.wait(xt[k])
        for d in range(4):
            P(f"v_dot2c_f32_bf16 {ss[d % 2]}, {sOnes}, {vX[4 * k + d]}\nv_dot2c_f32_bf16 {qq[d % 2]}, {vX[4 * k + d]}, {vX[4 * k + d]}")
    P.wait(te)
    for d in range(4):
        P(f"v_dot2c_f32_bf16 {es}, {sOnes}, {vEx[d]}\nv_dot2c_f32_bf16 {eq}, {vEx[d]}, {vEx[d]}")
    P(f"v_add_f32 {ss[0]}, {ss[0]}, {ss[1]}\nv_add_f32 {qq[0]}, {qq[0]}, {qq[1]}")
    four = [ss[0], qq[0], es, eq]
    for op in ('v_permlane32_swap_b32', 'v_permlane16_swap_b32'):
        for n, r in enumerate(four):
            P(f"v_mov_b32 {vt[4 + n]}, {r}")
        for n, r in enumerate(four):
            P(f"{op} {r}, {vt[4 + n]}")
        for n, r in enumerate(four):
            P(f"v_add_f32 {r}, {r}, {vt[4 + n]}")
    for rot in (8, 4, 2, 1):
        for r in (es, eq):
            P(f"v_add_f32_dpp {r}, {r}, {r} row_ror:{rot} row_mask:0xf bank_mask:0xf")
    vS0 = V.get(2)
    vS1 = V.get(2)
    C0 = -2.0 * math.sqrt(2.0 / math.pi) * math.log2(math.e)
    C1 = C0 * 0.044715
    mean, var, r1 = ss[0], qq[0], ss[1]
    P(f"""
    v_mul_f32 {mean}, {hx(1 / 512)}, {mean}
    v_mul_f32 {es}, {hx(1 / 512)}, {es}
    v_mul_f32 {var}, {hx(1 / 512)}, {var}
    v_mul_f32 {eq}, {hx(1 / 512)}, {eq}
    v_fma_f32 {var}, -{mean}, {mean}, {var}
    v_fma_f32 {eq}, -{es}, {es}, {eq}
    v_max_f32 {var}, 0, {var}
    v_max_f32 {eq}, 0, {eq}
    v_add_f32 {r1}, {hx(1e-5)}, {var}
    v_add_f32 {eq}, {hx(1e-5)}, {eq}
    v_rsq_f32 {r1}, {r1}
    v_rsq_f32 {eq}, {eq}
    s_lshl_b32 {t0}, {sW}, 4
    s_sub_u32 {t0}, {t0}, {sSH}
    s_lshl_b32 {t0}, {t0}, 2
    s_add_u32 {t0}, {t0}, {SM + 16}
    v_lshl_add_u32 {vt[4]}, {vLo4}, 2, {t0}
    s_sub_u32 {t0}, {sOE}, {sSH}
    s_lshl_b32 {t0}, {t0}, 2
    s_add_u32 {t0}, {t0}, {SM + 16}
    v_mov_b32 {vt[5]}, {t0}
    s_mov_b64 exec, 0xffff
    ds_write_b32 {vt[4]}, {mean}
    ds_write_b32 {vt[4]}, {r1} offset:{SR - SM}
    s_mov_b64 exec, 1
    ds_write_b32 {vt[5]}, {es}
    ds_write_b32 {vt[5]}, {eq} offset:{SR - SM}
    s_mov_b64 exec, -1
    v_mul_f32 {var}, {var}, {r1}
    v_fma_f32 {var}, {var}, {r1}, {qq[1]}""".replace(f"v_fma_f32 {var}, {var}, {r1}, {qq[1]}", f"v_mul_f32 {var}, {var}, {r1}"))
    P(f"""
    v_add_f32 {var}, {hx(1e-5)}, {var}
    v_rsq_f32 {var}, {var}
    v_sub_f32 {vS0[0]}, 0, {mean}
    v_mul_f32 {var}, {var}, {r1}
    v_rcp_f32 {vS1[1]}, {var}
    v_mul_f32 {vS1[0]}, {hx(C0)}, {var}
    v_mul_f32 {r1}, {var}, {var}
    v_mul_f32 {r1}, {r1}, {var}
    v_mul_f32 {vS0[1]}, {hx(C1)}, {r1}""")
    V.put(ss, qq, es, eq, vEx)
    vU0, vXr, vXf, vSt = V.get(), V.get(), V.get(), V.get()

    def unshifted_base(dst, key, urow):
        return f"""
        v_add_u32 {key}, {sSH}, {urow}
        v_and_b32 {vt[7]}, 1, {key}
        v_lshlrev_b32 {vt[7]}, 10, {vt[7]}
        v_add_u32 {vt[7]}, {EX}, {vt[7]}
        v_lshlrev_b32 {dst}, 10, {key}
        v_cmp_gt_u32 vcc, 64, {key}
        v_and_b32 {key}, 15, {key}
        v_cndmask_b32 {dst}, {vt[7]}, {dst}, vcc"""
    P(f"s_lshl_b32 {t0}, {sW}, 4\nv_add_u32 {vt[4]}, {t0}, {vLo4}")
    P(f"v_lshlrev_b32 {vSt}, 2, {vt[4]}\nv_add_u32 {vSt}, {SM + 16}, {vSt}")
    P(unshifted_base(vt[5], vt[6], vt[4]))
    P(f"""
    v_xor_b32 {vt[4]}, {vHi2}, {vt[6]}
    v_lshl_add_u32 {vU0}, {vt[4]}, 4, {vt[5]}
    s_lshr_b32 {t0}, {sW}, 1
    s_lshl_b32 {t0}, {t0}, 2
    s_and_b32 {t1}, {sW}, 1
    s_add_u32 {t0}, {t0}, {t1}
    s_lshl_b32 {t1}, {sJ}, 3
    s_add_u32 {t0}, {t0}, {t1}
    v_and_b32 {vt[4]}, 2, {vHi2}
    v_add_u32 {vt[4]}, {t0}, {vt[4]}
    v_xor_b32 {vt[4]}, {vt[4]}, {vt[6]}
    v_lshl_add_u32 {vXr}, {vt[4]}, 4, {vt[5]}
    v_and_b32 {vt[4]}, 1, {vHi2}
    v_lshl_add_u32 {vXr}, {vt[4]}, 3, {vXr}
    s_and_b32 {t0}, {sW}, 1
    s_lshl_b32 {t0}, {t0}, 5
    v_and_b32 {vt[4]}, 31, {v0}
    v_add_u32 {vt[4]}, {t0}, {vt[4]}""")
    P(unshifted_base(vt[5], vt[6], vt[4]))
    P(f"""
    s_lshr_b32 {t0}, {sW}, 1
    s_lshl_b32 {t0}, {t0}, 2
    s_add_u32 {t0}, {t0}, {t1}
    v_and_b32 {vt[4]}, 2, {vHi2}
    v_add_u32 {vt[4]}, {t0}, {vt[4]}
    v_xor_b32 {vt[4]}, {vt[4]}, {vt[6]}
    v_lshl_add_u32 {vXf}, {vt[4]}, 4, {vt[5]}""")
    vB = V.get(4)
    vZp = V.get()
    P(f"""
    v_and_b32 {vt[4]}, 2, {v0}
    v_and_b32 {vt[5]}, 1, {vHi2}
    v_xor_b32 {vt[4]}, {vt[4]}, {vt[5]}
    v_lshlrev_b32 {vt[4]}, 4, {vt[4]}
    v_and_b32 {vt[5]}, 1, {v0}
    v_lshl_add_u32 {vt[4]}, {vt[5]}, 3, {vt[4]}
    v_add_u32 {vt[4]}, {vt[4]}, {vR64}
    v_lshl_add_u32 {vZp}, {vHi2}, 10, {vt[4]}
    s_and_b32 {t0}, {sW}, 1
    s_lshl_b32 {t0}, {t0}, 4
    s_lshr_b32 {t1}, {sW}, 1
    s_lshl_b32 {t1}, {t1}, 8
    s_add_u32 {t0}, {t0}, {t1}
    v_xor_b32 {vB[0]}, {t0}, {vZp}
    v_add_u32 {vB[0]}, {R1}, {vB[0]}
    v_xor_b32 {vB[1]}, 16, {vB[0]}
    v_xor_b32 {vB[2]}, 256, {vB[0]}
    v_xor_b32 {vB[3]}, 272, {vB[0]}""")
    vOnes = V.get(4)
    for d in range(4):
        P(f"v_mov_b32 {vOnes[d]}, {sOnes}")
    stamp('stats')

    aXU = A.get(64)
    aRing = A.get(32)
    vXres = V.get(8)
    vXF = V.get(8)
    vMu = V.get(2)
    acc = V.get(16)
    vCs = V.get(16)
    D = 6

    def gemm16(xfrag, bar_before, extra, ones, init_zero, a_wait=None):
        toks = {}

        def rd(n):
            if n in bar_before:
                bar_before[n]()
            k, sg = divmod(n, 4)
            r = aRing[4 * (n % 8):4 * (n % 8) + 4]
            P(f"ds_read_b64_tr_b16 {r[0:2]}, {vB[sg]} offset:{k * 4096}")
            toks[n] = P(f"ds_read_b64_tr_b16 {r[2:4]}, {vB[sg]} offset:{k * 4096 + 512}")
        for n in range(D):
            rd(n)
        for n in range(64):
            k, sg = divmod(n, 4)
            if n + D < 64:
                rd(n + D)
            w = [toks[n]]
            if a_wait and sg == 0:
                w.append(a_wait(k))
            P.wait(*w)
            r = aRing[4 * (n % 8):4 * (n % 8) + 4]
            c = '0' if (init_zero and k == 0) else acc[4 * sg:4 * sg + 4]
            if ones and sg == 0:
                P(f"v_mfma_f32_16x16x32_bf16 {vCs[0:4]}, {r}, {vOnes}, {'0' if k == 0 else vCs[0:4]}")
            P(f"v_mfma_f32_16x16x32_bf16 {acc[4 * sg:4 * sg + 4]}, {r}, {xfrag(k)}, {c}")
            P.emit(extra.get(n, []))

    def w1bar(ch):
        def f():
            if ch == 0:
                P.wait(tok[('w1', 0)], P.lg_tok())
                P("s_barrier")
                stamp('w1_0')
                for k in range(16):
                    if k % 4:
                        P(f"v_xor_b32 {vt[k % 2]}, {64 * (k % 4)}, {vU0}")
                    P(f"ds_read_b128 {aXU[4 * k:4 * k + 4]}, {vt[k % 2] if k % 4 else vU0} offset:{256 * (k // 4)}")
                for sg in range(4):
                    x = (4 * (sg >> 1) + (sg & 1)) * 16
                    if x:
                        P(f"v_xor_b32 {vt[sg % 2]}, {x}, {vXr}")
                    P(f"ds_read_b64 {vXres[2 * sg:2 * sg + 2]}, {vt[sg % 2] if x else vXr}")
                P(f"""ds_read_b128 {vXF[0:4]}, {vXf}
                v_xor_b32 {vt[0]}, 16, {vXf}
                ds_read_b128 {vXF[4:8]}, {vt[0]}
                ds_read_b32 {vMu[0]}, {vSt}""")
                tok['xu'] = P(f"ds_read_b32 {vMu[1]}, {vSt} offset:{SR - SM}")
            else:
                w = [tok[('w1', ch)]]
                if ch == 1:
                    w.append(tok['xu'])
                P.wait(*w)
                P("s_barrier")
                if ch == 3:
                    stamp('w1_3')
        return f
    w2l = wtile_dma(sW2, R0, 'w2')
    extra = {}
    for n, it in enumerate(w2l):
        extra.setdefault(16 - D + 2 * n, []).append(it)
    gemm16(lambda k: vX[4 * k:4 * k + 4], {0: w1bar(0), 16: w1bar(1), 32: w1bar(2), 48: w1bar(3)}, extra, True, True)
    V.put(vU0, vXr, vXf, vSt, vA0, vX)
    stamp('gemm1')
    P(f"""
    s_lshl_b32 {t0}, {sW}, 6
    s_add_u32 {t0}, {t0}, {CS1}
    v_lshl_add_u32 {vt[0]}, {vHi2}, 4, {t0}
    v_xor_b32 {vt[1]}, 64, {vt[0]}
    v_xor_b32 {vt[2]}, 128, {vt[0]}
    v_xor_b32 {vt[3]}, 192, {vt[0]}
    s_mov_b32 exec_lo, 0x00010001
    s_mov_b32 exec_hi, 0x00010001
    ds_write_b128 {vt[0]}, {vCs[0:4]}
    s_mov_b64 exec, -1""")
    P.wait(tok['wd'], P.lg_tok())
    P("s_barrier")
    ct = [None] + [P(f"ds_read_b128 {vCs[4 * sg:4 * sg + 4]}, {vt[sg]}") for sg in range(1, 4)]
    aWd = A.get(64)
    P(f"""
    v_xor_b32 {vt[4]}, {vHi2}, {vLo4}
    v_lshlrev_b32 {vt[4]}, 4, {vt[4]}
    v_lshl_add_u32 {vt[4]}, {vLo4}, 8, {vt[4]}
    v_add_u32 {vt[4]}, {R2}, {vt[4]}
    v_xor_b32 {vt[5]}, 64, {vt[4]}
    v_xor_b32 {vt[6]}, 128, {vt[4]}
    v_xor_b32 {vt[7]}, 192, {vt[4]}""")
    wdr = [f"ds_read_b128 {aWd[16 * t + 4 * k:16 * t + 4 * k + 4]}, {vt[4 + k]} offset:{4096 * t}" for k in range(4) for t in range(4)]

    vTmp = V.get(8)
    vO = V.get(8)

    def gelu_pk(a, cs, o, tmp, s0, s1):
        return [f"v_pk_fma_f32 {a}, {cs}, {s0}, {a} op_sel_hi:[1,0,1]",
                f"v_pk_mul_f32 {tmp}, {a}, {a}",
                f"v_pk_fma_f32 {tmp}, {tmp}, {s0}, {s1} op_sel:[0,1,0] op_sel_hi:[1,1,0]",
                f"v_pk_mul_f32 {tmp}, {tmp}, {a}",
                f"v_exp_f32 {tmp[0]}, {tmp[0]}", f"v_exp_f32 {tmp[1]}, {tmp[1]}",
                f"v_pk_fma_f32 {tmp}, {tmp}, {s1}, {s1} op_sel:[0,1,1] op_sel_hi:[1,1,1]",
                f"v_rcp_f32 {tmp[0]}, {tmp[0]}", f"v_rcp_f32 {tmp[1]}, {tmp[1]}",
                f"v_pk_mul_f32 {tmp}, {tmp}, {a}",
                f"v_cvt_pk_bf16_f32 {o}, {tmp[0]}, {tmp[1]}"]

    def zip2(a, b):
        out = []
        for x, y in zip(a, b):
            out += [x, y]
        return out
    for sg in range(4):
        if sg:
            P.wait(ct[sg])
        seq = zip2(gelu_pk(acc[4 * sg:4 * sg + 2], vCs[4 * sg:4 * sg + 2], vO[2 * sg], vTmp[0:2], vS0, vS1),
                   gelu_pk(acc[4 * sg + 2:4 * sg + 4], vCs[4 * sg + 2:4 * sg + 4], vO[2 * sg + 1], vTmp[2:4], vS0, vS1))
        P.emit(interleave(seq, wdr[4 * sg + 4:4 * sg + 8] if sg < 3 else [], lead=0) if sg else interleave(seq, wdr[0:8], lead=8))
    tok['wdr'] = P.lg_tok()
    V.put(vCs)
    vSTo = V.get()
    sSo = S.get(2, 2)
    P(f"""
    s_and_b32 {t0}, {sW}, 1
    v_xor_b32 {vt[0]}, {t0}, {vHi2}
    v_lshlrev_b32 {vt[0]}, 10, {vt[0]}
    s_lshl_b32 {t0}, {sW}, 8
    v_lshl_add_u32 {vt[1]}, {vLo4}, 4, {t0}
    v_add_u32 {vSTo}, {vt[0]}, {vt[1]}
    s_lshl_b32 {t0}, {sG}, 16
    s_lshl_b32 {t1}, {sJ}, 13
    s_add_u32 {t0}, {t0}, {t1}
    s_lshr_b32 {t1}, {sW}, 1
    s_lshl_b32 {t1}, {t1}, 12
    s_add_u32 {sSo[0]}, {t0}, {t1}
    s_xor_b32 {sSo[1]}, {sSo[0]}, 4096""")

    def swap_store(base):
        for v in range(2):
            for d in range(2):
                P(f"v_permlane16_swap_b32 {vO[4 * v + d]}, {vO[4 * v + 2 + d]}")
        P(f"s_add_u32 {t0}, {sSo[0]}, {base}\ns_add_u32 {t1}, {sSo[1]}, {base}")
        P(f"buffer_store_dwordx4 {vO[0:4]}, {vSTo}, {sWS}, {t0} offen {ST}")
        return P(f"buffer_store_dwordx4 {vO[4:8]}, {vSTo}, {sWS}, {t1} offen {ST}")
    lz = P.label('L_nozero')
    P(f"s_mov_b64 exec, {sInv}\ns_cbranch_execz {lz}")
    for d in range(8):
        P(f"v_mov_b32 {vO[d]}, 0")
    P(f"{lz}:\ns_mov_b64 exec, -1")
    tok['hst'] = swap_store(HS)
    stamp('h_stored')

    vW3q = V.get(4)
    sW3o = S.get()
    P(f"""
    s_movk_i32 {t0}, 2752
    v_mul_u32_u24 {vt[0]}, {t0}, {vPat}
    v_and_b32 {vt[1]}, 1, {vHi2}
    v_lshlrev_b32 {vt[1]}, 6, {vt[1]}
    v_and_b32 {vt[2]}, 3, {v0}
    v_lshl_add_u32 {vt[1]}, {vt[2]}, 4, {vt[1]}
    v_add_u32 {vW3q[0]}, {vt[0]}, {vt[1]}
    v_add_u32 {vW3q[1]}, {8 * 2752 - 1024}, {vW3q[0]}
    v_add_u32 {vW3q[2]}, {2 * (8 * 2752 - 1024)}, {vW3q[0]}
    v_add_u32 {vW3q[3]}, {3 * (8 * 2752 - 1024)}, {vW3q[0]}
    s_mul_i32 {sW3o}, {sW}, {128 * 2752}
    s_lshl_b32 {t0}, {sC}, 7
    s_add_u32 {sW3o}, {sW3o}, {t0}
    s_lshl_b32 {t0}, {sW}, 14
    s_add_u32 m0, {t0}, {R1}""")
    w3a = []
    for i in range(4):
        for q in range(4):
            pre = f"s_add_u32 m0, m0, 4096\ns_add_u32 {sW3o}, {sW3o}, {32 * 2752}\n" if (i and q == 0) else ''
            w3a.append(pre + f"buffer_load_dwordx4 {vW3q[q]}, {sW3}, {sW3o} offen offset:{q * 1024} lds")
    dE = V.get(16)
    dO = V.get(32)
    dC = V.get(8)
    mf = []
    for q in range(4):
        for k in range(4):
            xa = aXU[16 * q + 4 * k:16 * q + 4 * k + 4]
            for t in range(4):
                if t < 2:
                    d = dE[8 * t + 4 * (q & 1):8 * t + 4 * (q & 1) + 4]
                    first = q < 2 and k == 0
                else:
                    d = dO[16 * (t - 2) + 4 * q:16 * (t - 2) + 4 * q + 4]
                    first = k == 0
                mf.append(f"v_mfma_f32_16x16x32_bf16 {d}, {xa}, {aWd[16 * t + 4 * k:16 * t + 4 * k + 4]}, {'0' if first else d}")
            if q == 0:
                for t in range(2):
                    d = dC[4 * t:4 * t + 4]
                    mf.append(f"v_mfma_f32_16x16x32_bf16 {d}, {vOnes}, {aWd[16 * t + 4 * k:16 * t + 4 * k + 4]}, {'0' if k == 0 else d}")
    ini = [f"v_mul_f32 {vMu[0]}, {vMu[0]}, {vMu[1]}"]
    for d in range(8):
        ini += [f"v_lshlrev_b32 {acc[2 * d]}, 16, {vXres[d]}", f"v_and_b32 {acc[2 * d + 1]}, 0xffff0000, {vXres[d]}",
                f"v_fma_f32 {acc[2 * d]}, {acc[2 * d]}, {vMu[1]}, -{vMu[0]}", f"v_fma_f32 {acc[2 * d + 1]}, {acc[2 * d + 1]}, {vMu[1]}, -{vMu[0]}"]
    P.wait(tok['wdr'])
    HP = opt.get('hflag_at', 56)
    P.emit(interleave(mf[:HP], zip2(w3a, ini[:16]) + ini[16:], lead=0))
    vFl = V.get(2)

    def wg_flag(off_expr):
        l = P.label('L_flag')
        P(f"s_cmp_lg_u32 {sW}, 0\ns_cbranch_scc1 {l}")
        P(off_expr)
        P(f"v_mov_b32 {vFl[0]}, 0\nv_mov_b32 {vFl[1]}, {sNN[0]}\ns_mov_b64 exec, 1")
        P(f"buffer_store_dword {vFl[1]}, {vFl[0]}, {sWS}, {t0} offen {ST}", optional=True)
        P(f"s_mov_b64 exec, -1\n{l}:")

    def wave_flag(off_expr):
        P(off_expr)
        P(f"v_mov_b32 {vFl[0]}, 0\nv_mov_b32 {vFl[1]}, {sNN[0]}\ns_mov_b64 exec, 1")
        P(f"buffer_store_dword {vFl[1]}, {vFl[0]}, {sWS}, {t0} offen sc1")
        P("s_mov_b64 exec, -1")

    def poll_issue(off, n):
        P(f"s_load_dwordx{n} {sFl[0:n]}, {sWS[0:2]}, {off} glc")

    def poll_check(off, n, issued=False):
        l, l2, l3 = P.label('L_poll'), P.label('L_pdone'), P.label('L_pchk')
        P(f"s_mov_b32 {sNZ}, {SPIN}")
        if issued:
            P(f"s_branch {l3}")
        P(f"{l}:")
        poll_issue(off, n)
        if issued:
            P(f"{l3}:")
        P("s_waitcnt lgkmcnt(0)")
        for i in range(0, n, 2):
            P(f"s_xor_b64 {sFl[i:i + 2]}, {sFl[i:i + 2]}, {sNN}")
        m = n
        while m > 2:
            m //= 2
            for i in range(0, m, 2):
                P(f"s_or_b64 {sFl[i:i + 2]}, {sFl[i:i + 2]}, {sFl[i + m:i + m + 2]}")
        P(f"""s_cbranch_scc0 {l2}
        s_sub_u32 {sNZ}, {sNZ}, 1
        s_cbranch_scc0 {l}
        {l2}:""")

    def wg_poll(off_expr, n):
        l = P.label('L_wgp')
        if opt.get('allpoll'):
            P(off_expr)
            poll_check(t2, n)
            return
        P(f"s_cmp_lg_u32 {sW}, 0\ns_cbranch_scc1 {l}")
        P(off_expr)
        poll_check(t2, n)
        P(f"{l}:")

    P.wait(tok['hst'])
    P("s_barrier")
    wg_flag(f"s_lshl_b32 {t0}, {sG}, 7\ns_lshl_b32 {t1}, {sJ}, 2\ns_add_u32 {t0}, {t0}, {t1}\ns_add_u32 {t0}, {t0}, {FH}")
    stamp('h_flag')
    P.emit(mf[HP:])
    vRm, vRr = V.get(4), V.get(4)
    vSg = V.get(2)
    P(f"""
    s_lshl_b32 {t0}, {sW}, 6
    s_add_u32 {t0}, {t0}, {SM + 16}
    v_lshl_add_u32 {vt[0]}, {vHi2}, 4, {t0}
    ds_read_b128 {vRm}, {vt[0]}""")
    tok['rr'] = P(f"ds_read_b128 {vRr}, {vt[0]} offset:{SR - SM}")
    P(f"""
    v_and_b32 {vt[1]}, 1, {v0}
    v_lshlrev_b32 {vt[1]}, 31, {vt[1]}
    v_xor_b32 {vSg[0]}, {hx(-1.0)}, {vt[1]}
    v_add_f32 {vSg[1]}, 1.0, {vSg[0]}
    v_mul_f32 {vSg[1]}, -2.0, {vSg[1]}""")
    stamp('dft_mfma')
    wg_poll(f"s_lshl_b32 {t2}, {sG}, 7\ns_add_u32 {t2}, {t2}, {FH}", 8)
    if not opt.get('allpoll'):
        P("s_barrier")
    stamp('h_seen')

    aH = aXU
    vLDo = V.get()
    sLo = S.get()
    P(f"""
    s_lshl_b32 {t0}, {sW}, 8
    v_lshl_add_u32 {vt[0]}, {vLo4}, 4, {t0}
    v_lshl_add_u32 {vLDo}, {vHi2}, 10, {vt[0]}
    s_lshl_b32 {sLo}, {sG}, 16
    s_add_u32 {sLo}, {sLo}, {HS}""")
    ht = {}

    def hload(k):
        def f(p):
            ht[k] = p(f"buffer_load_dwordx4 {aH[4 * k:4 * k + 4]}, {vLDo}, {sWS}, {sLo} offen sc1")
            if k < 15:
                p(f"s_add_u32 {sLo}, {sLo}, 4096")
        return f
    for k in range(10):
        hload(k)(P)
    for sg in range(4):
        P(f"v_subrev_u32 {vB[sg]}, {R1}, {vB[sg]}")
    ep = []
    kc, km = vt[0], vt[1]
    ep += [f"v_mul_f32 {kc}, {vSg[1]}, {dC[0]}", f"v_mul_f32 {km}, {vSg[1]}, {dC[4]}"]
    vK = vTmp[4:6]
    ep += [f"v_mov_b32 {vK[0]}, {kc}", f"v_mov_b32 {vK[1]}, {km}"]
    for h in range(2):
        sl = slice(2 * h, 2 * h + 2)
        for t in range(2):
            e0, e1 = dE[8 * t:8 * t + 4][sl], dE[8 * t + 4:8 * t + 8][sl]
            ep += [f"v_pk_fma_f32 {e0}, {e1}, {vSg}, {e0} op_sel_hi:[1,0,1]",
                   f"v_pk_fma_f32 {e0}, {vRm[sl]}, {vK}, {e0} op_sel:[0,{t},0] op_sel_hi:[1,{t},1]",
                   f"v_pk_mul_f32 {e0}, {e0}, {vRr[sl]}",
                   f"v_cvt_pk_bf16_f32 {vO[2 * t + h]}, {e0[0]}, {e0[1]}"]
        C = [dO[4 * q:4 * q + 4][sl] for q in range(4)]
        M = [dO[16 + 4 * q:16 + 4 * q + 4][sl] for q in range(4)]
        neg = "neg_lo:[0,1] neg_hi:[0,1]"
        ep += [f"v_pk_add_f32 {C[0]}, {C[0]}, {C[2]} {neg}", f"v_pk_add_f32 {M[1]}, {M[1]}, {M[3]} {neg}",
               f"v_pk_add_f32 {M[0]}, {M[0]}, {M[2]} {neg}", f"v_pk_add_f32 {C[1]}, {C[1]}, {C[3]} {neg}",
               f"v_pk_fma_f32 {C[0]}, {M[1]}, {vSg}, {C[0]} op_sel_hi:[1,0,1] neg_lo:[0,1,0] neg_hi:[0,1,0]",
               f"v_pk_fma_f32 {M[0]}, {C[1]}, {vSg}, {M[0]} op_sel_hi:[1,0,1]",
               f"v_pk_mul_f32 {C[0]}, {C[0]}, {vRr[sl]}", f"v_pk_mul_f32 {M[0]}, {M[0]}, {vRr[sl]}",
               f"v_cvt_pk_bf16_f32 {vO[4 + h]}, {C[0][0]}, {C[0][1]}", f"v_cvt_pk_bf16_f32 {vO[6 + h]}, {M[0][0]}, {M[0][1]}"]
    P.wait(tok['rr'])
    P.emit(interleave(ep, [hload(k) for k in range(10, 16)], lead=2))
    P(f"""
    s_movk_i32 {t0}, 144
    v_mul_u32_u24 {vt[2]}, {t0}, {vLo4}
    v_lshl_add_u32 {vt[2]}, {vHi2}, 3, {vt[2]}
    s_lshl_b32 {t1}, {sW}, 5
    s_add_u32 {t1}, {t1}, {TIMG}
    v_add_u32 {vt[2]}, {t1}, {vt[2]}""")
    for t in range(4):
        P(f"ds_write_b64 {vt[2]}, {vO[2 * t:2 * t + 2]} offset:{t * 16 * 144}")
    P(f"""
    v_lshrrev_b32 {vt[3]}, 3, {v0}
    v_lshrrev_b32 {vt[4]}, 1, {vt[3]}
    s_lshl_b32 {t1}, {sW}, 2
    v_add_u32 {vt[4]}, {t1}, {vt[4]}
    v_and_b32 {vt[5]}, 1, {vt[3]}
    v_xor_b32 {vt[5]}, 1, {vt[5]}
    v_lshl_add_u32 {vt[4]}, {vt[5]}, 5, {vt[4]}
    v_mul_u32_u24 {vt[4]}, {t0}, {vt[4]}
    v_and_b32 {vt[5]}, 7, {v0}
    v_lshl_add_u32 {vt[4]}, {vt[5]}, 4, {vt[4]}
    v_add_u32 {vt[4]}, {TIMG}, {vt[4]}
    v_lshlrev_b32 {vt[3]}, 13, {vt[3]}
    v_lshl_add_u32 {vt[3]}, {vt[5]}, 4, {vt[3]}
    s_lshl_b32 {t0}, {sJ}, 2
    s_add_u32 {t0}, {t0}, {sW}
    s_lshl_b32 {t0}, {t0}, 16
    s_lshl_b32 {t1}, {sG}, 7
    s_add_u32 {t0}, {t0}, {t1}
    s_add_u32 {t0}, {t0}, {AT}
    s_add_u32 {t1}, {t0}, 4096
    s_waitcnt lgkmcnt(0)
    s_barrier""")
    a0 = P(f"ds_read_b128 {vO[0:4]}, {vt[4]}")
    a1 = P(f"ds_read_b128 {vO[4:8]}, {vt[4]} offset:{16 * 144}")
    V.put(dE, dO, dC, vRm, vRr, vSg, vXres, vMu)
    A.put(aWd)

    def atst(p):
        p.wait(a0)
        p(f"buffer_store_dwordx4 {vO[0:4]}, {vt[3]}, {sWS}, {t0} offen sc1")
        p.wait(a1)
        p(f"buffer_store_dwordx4 {vO[4:8]}, {vt[3]}, {sWS}, {t1} offen sc1")
    stamp('dft_done')
    gemm16(lambda k: aH[4 * k:4 * k + 4], {}, {0: [atst]}, False, False, a_wait=lambda k: ht[k])
    stamp('gemm2')
    for d in range(8):
        P(f"v_cvt_pk_bf16_f32 {vO[d]}, {acc[2 * d]}, {acc[2 * d + 1]}")
    swap_store(X1)
    su, sq = vTmp[0:2], vTmp[2:4]
    P(f"v_pk_add_f32 {su}, {acc[0:2]}, {acc[2:4]}\nv_pk_mul_f32 {sq}, {acc[0:2]}, {acc[0:2]}\nv_pk_fma_f32 {sq}, {acc[2:4]}, {acc[2:4]}, {sq}")
    for d in range(2, 8):
        P(f"v_pk_add_f32 {su}, {su}, {acc[2 * d:2 * d + 2]}\nv_pk_fma_f32 {sq}, {acc[2 * d:2 * d + 2]}, {acc[2 * d:2 * d + 2]}, {sq}")
    P(f"v_add_f32 {su[0]}, {su[0]}, {su[1]}\nv_add_f32 {su[1]}, {sq[0]}, {sq[1]}")
    for op in ('v_permlane32_swap_b32', 'v_permlane16_swap_b32'):
        P(f"""v_mov_b32 {sq[0]}, {su[0]}
        v_mov_b32 {sq[1]}, {su[1]}
        {op} {su[0]}, {sq[0]}
        {op} {su[1]}, {sq[1]}
        v_pk_add_f32 {su}, {su}, {sq}""")
    P(f"""
    s_lshl_b32 {t0}, {sG}, 3
    s_add_u32 {t0}, {t0}, {sJ}
    s_lshl_b32 {t0}, {t0}, 9
    s_lshl_b32 {t1}, {sW}, 7
    s_add_u32 {t0}, {t0}, {t1}
    s_add_u32 {t0}, {t0}, {STATS}
    v_lshlrev_b32 {vt[0]}, 3, {v0}
    s_mov_b64 exec, 0xffff""")
    tok['x1st'] = P(f"buffer_store_dwordx2 {su}, {vt[0]}, {sWS}, {t0} offen {ST}")
    P("s_mov_b64 exec, -1")
    stamp('x1_stored')
    V.put(vLDo, vSTo, vWq, acc)
    S.put(sSo)
    A.put(aXU, aRing)
    vN = V.get()
    vN2 = V.get()
    vC1 = V.get()
    vSel = V.get(4)
    vCw = V.get()
    P(f"""
    v_and_b32 {vt[0]}, 1, {v0}
    v_lshlrev_b32 {vt[0]}, 5, {vt[0]}
    v_bfe_u32 {vt[1]}, {v0}, 1, 1
    v_lshl_add_u32 {vt[0]}, {vt[1]}, 3, {vt[0]}
    v_and_b32 {vt[1]}, 1, {vHi2}
    v_lshl_add_u32 {vt[0]}, {vt[1]}, 4, {vt[0]}
    v_add_u32 {vt[0]}, {vt[0]}, {vR64}
    v_lshrrev_b32 {vt[2]}, 5, {v0}
    v_lshl_add_u32 {vN}, {vt[2]}, 10, {vt[0]}
    v_lshl_add_u32 {vN2}, {vt[2]}, 9, {vt[0]}
    v_add_u32 {vC1}, {R1}, {vN}
    v_cmp_eq_u32 vcc, {vt[1]}, {vLo4}
    v_mov_b32 {vt[3]}, {sOnes}
    v_cndmask_b32 {vSel[0]}, 0, {vt[3]}, vcc
    v_mov_b32 {vSel[1]}, {vSel[0]}
    v_mov_b32 {vSel[2]}, {vSel[0]}
    v_mov_b32 {vSel[3]}, {vSel[0]}
    v_bfe_u32 {vt[0]}, {v0}, 2, 1
    v_lshlrev_b32 {vt[0]}, 6, {vt[0]}
    v_bfe_u32 {vt[1]}, {v0}, 3, 1
    v_lshl_add_u32 {vt[0]}, {vt[1]}, 4, {vt[0]}
    v_and_b32 {vt[1]}, 3, {v0}
    v_lshl_add_u32 {vCw}, {vt[1]}, 2, {vt[0]}
    v_add_u32 {vCw}, {CS3}, {vCw}
    s_movk_i32 {t0}, 2752
    v_lshl_add_u32 {vt[0]}, {vHi2}, 2, {vt[1]}""".replace(f"v_lshl_add_u32 {vt[0]}, {vHi2}, 2, {vt[1]}", f"v_lshrrev_b32 {vt[0]}, 2, {v0}"))
    P(f"""
    v_mul_u32_u24 {vt[0]}, {t0}, {vt[0]}
    v_lshl_add_u32 {vW3q[0]}, {vt[1]}, 4, {vt[0]}
    v_add_u32 {vW3q[1]}, {16 * 2752 - 1024}, {vW3q[0]}
    v_add_u32 {vW3q[2]}, {2 * (16 * 2752 - 1024)}, {vW3q[0]}
    v_add_u32 {vW3q[3]}, {3 * (16 * 2752 - 1024)}, {vW3q[0]}
    s_mul_i32 {sW3o}, {sW}, {128 * 2752}
    s_min_u32 {t0}, {sC}, 10
    s_lshl_b32 {t0}, {t0}, 6
    s_add_u32 {sW3o}, {sW3o}, {t0}
    s_add_u32 {sW3o}, {sW3o}, 2048""")
    P.wait(tok['x1st'])
    wave_flag(f"""s_lshl_b32 {t0}, {sJ}, 2
    s_add_u32 {t0}, {t0}, {sW}
    s_lshl_b32 {t0}, {t0}, 5
    s_add_u32 {t0}, {t0}, {sG}
    s_lshl_b32 {t0}, {t0}, 2
    s_add_u32 {t0}, {t0}, {FA}""")
    P("s_barrier")
    wg_flag(f"s_lshl_b32 {t0}, {sG2}, 7\ns_lshl_b32 {t1}, {sC}, 2\ns_add_u32 {t0}, {t0}, {t1}\ns_add_u32 {t0}, {t0}, {FX}")
    stamp('x1_flag')
    P(f"s_lshl_b32 {t0}, {sW}, 13\ns_add_u32 m0, {t0}, {R0}\ns_nop 0")
    for i in range(2):
        if i:
            P(f"s_add_u32 m0, m0, 4096\ns_add_u32 {sW3o}, {sW3o}, {64 * 2752}")
        for q in range(4):
            tok['w3b'] = P(f"buffer_load_dwordx4 {vW3q[q]}, {sW3}, {sW3o} offen offset:{q * 1024} lds")
    V.put(vW3q)

    vRing = V.get(32)
    vCa = V.get(4)

    def colsum(addr, kstride, hstride, cw_off, extra):
        toks = {}

        def rd(k):
            r = vRing[4 * (k % 8):4 * (k % 8) + 4]
            P(f"ds_read_b64_tr_b16 {r[0:2]}, {addr} offset:{k * kstride}")
            toks[k] = P(f"ds_read_b64_tr_b16 {r[2:4]}, {addr} offset:{k * kstride + hstride}")
        for k in range(6):
            rd(k)
        for k in range(32):
            if k + 6 < 32:
                rd(k + 6)
            P.wait(toks[k])
            P(f"v_mfma_f32_16x16x32_bf16 {vCa}, {vSel}, {vRing[4 * (k % 8):4 * (k % 8) + 4]}, {'0' if k == 0 else vCa}")
            P.emit(extra.get(k, []))
        P(f"""s_mov_b64 exec, 0xffff
        ds_write_b32 {cw_off}, {vCa[0]}
        ds_write_b32 {cw_off}, {vCa[1]} offset:32
        s_mov_b64 exec, -1""")
    P(f"""
    s_and_b32 {t0}, {sW}, 1
    s_lshl_b32 {t1}, {t0}, 8
    v_add_u32 {vt[0]}, {t1}, {vC1}
    s_lshl_b32 {t1}, {t0}, 7
    v_add_u32 {vt[1]}, {t1}, {vCw}""")
    colsum(vt[0], 2048, 512, vt[1], {})
    stamp('cs01')
    wg_poll(f"s_lshl_b32 {t2}, {sG2}, 7\ns_add_u32 {t2}, {t2}, {FX}", 16)
    P.wait(tok['w3b'])
    P("s_barrier")
    stamp('x1_seen')

    aA = A.get(128)
    vAo, vSo4, vSo4t = V.get(), V.get(), V.get()
    vPs = V.get(8)
    sAo, sH2o, sH2t = S.get(), S.get(), S.get()
    P(f"""
    s_and_b32 {t0}, {sW}, 1
    s_lshl_b32 {t0}, {t0}, 5
    v_and_b32 {vt[0]}, 31, {v0}
    v_add_u32 {vt[0]}, {t0}, {vt[0]}
    v_lshrrev_b32 {vt[1]}, 5, {v0}
    v_lshlrev_b32 {vt[2]}, 4, {vt[0]}
    v_lshl_add_u32 {vAo}, {vt[1]}, 10, {vt[2]}
    v_lshl_add_u32 {vSo4}, {vt[1]}, 11, {vt[2]}
    v_lshlrev_b32 {vt[0]}, 3, {vt[0]}
    v_lshl_add_u32 {vt[0]}, {vt[1]}, 11, {vt[0]}
    s_lshl_b32 {t0}, {sG2}, 1
    s_lshr_b32 {t1}, {sW}, 1
    s_add_u32 {t0}, {t0}, {t1}
    s_lshl_b32 {sAo}, {t0}, 16
    s_add_u32 {sAo}, {sAo}, {X1}
    s_mul_i32 {sH2o}, {t0}, {H2G}
    s_lshl_b32 {t0}, {t0}, 12
    s_add_u32 {t0}, {t0}, {STATS}""")
    for i in range(4):
        tok['ps'] = P(f"buffer_load_dwordx2 {vPs[2 * i:2 * i + 2]}, {vt[0]}, {sWS}, {t0} offen offset:{512 * i} sc1")
    at = {}

    def aload(k):
        def f(p):
            at[k] = p(f"buffer_load_dwordx4 {aA[4 * k:4 * k + 4]}, {vAo}, {sWS}, {sAo} offen offset:{2048 * (k % 2)} sc1")
            if k % 2:
                p(f"s_add_u32 {sAo}, {sAo}, 4096")
        return f
    LA0 = 10
    for k in range(LA0):
        aload(k)(P)
    P(f"""
    s_add_u32 {sH2o}, {sH2o}, {H2}
    s_cmp_lt_u32 {sC}, 11
    s_cselect_b32 {t1}, 0, {WS_BYTES}
    v_add_u32 {vSo4t}, {t1}, {vSo4}
    s_min_u32 {t0}, {sC}, 10
    s_lshl_b32 {t0}, {t0}, 12
    s_add_u32 {sH2t}, {sH2o}, {t0}
    s_add_u32 {sH2t}, {sH2t}, {128 * 1024}
    s_lshl_b32 {t0}, {sC}, 13
    s_add_u32 {sH2o}, {sH2o}, {t0}
    v_add_u32 {vt[1]}, 256, {vCw}""")
    colsum(vN2, 1024, 256, vt[1], {4 * n + 2: [aload(LA0 + n)] for n in range(8)})
    V.put(vSel, vCa, vCw)
    stamp('cs2')
    P.wait(tok['ps'])
    P(f"""
    v_pk_add_f32 {vPs[0:2]}, {vPs[0:2]}, {vPs[2:4]}
    v_pk_add_f32 {vPs[4:6]}, {vPs[4:6]}, {vPs[6:8]}
    v_pk_add_f32 {vPs[0:2]}, {vPs[0:2]}, {vPs[4:6]}
    v_mov_b32 {vPs[2]}, {vPs[0]}
    v_mov_b32 {vPs[3]}, {vPs[1]}
    v_permlane32_swap_b32 {vPs[0]}, {vPs[2]}
    v_permlane32_swap_b32 {vPs[1]}, {vPs[3]}
    v_pk_add_f32 {vPs[0:2]}, {vPs[0:2]}, {vPs[2:4]}
    v_mul_f32 {vPs[0]}, {hx(1 / 512)}, {vPs[0]}
    v_mul_f32 {vPs[1]}, {hx(1 / 512)}, {vPs[1]}
    v_fma_f32 {vPs[1]}, -{vPs[0]}, {vPs[0]}, {vPs[1]}
    v_max_f32 {vPs[1]}, 0, {vPs[1]}
    v_add_f32 {vPs[1]}, {hx(1e-5)}, {vPs[1]}
    v_rsq_f32 {vPs[2]}, {vPs[1]}
    v_sub_f32 {vS0[0]}, 0, {vPs[0]}
    v_mul_f32 {vS1[1]}, {vPs[1]}, {vPs[2]}
    v_mul_f32 {vS1[0]}, {hx(C0)}, {vPs[2]}
    v_mul_f32 {vPs[3]}, {vPs[2]}, {vPs[2]}
    v_mul_f32 {vPs[3]}, {vPs[3]}, {vPs[2]}
    v_mul_f32 {vS0[1]}, {hx(C1)}, {vPs[3]}""")
    V.put(vPs)
    vW4q = V.get(4)
    sW4b, sW4o = S.get(), S.get()
    sWm, sWk = S.get(), S.get()
    P(f"""
    s_and_b32 {sWm}, {sW}, 1
    s_lshr_b32 {sWk}, {sW}, 1
    v_and_b32 {vt[0]}, 1, {vHi2}
    v_xor_b32 {vt[0]}, {sWk}, {vt[0]}
    v_lshlrev_b32 {vt[0]}, 6, {vt[0]}
    v_and_b32 {vt[1]}, 3, {v0}
    v_lshl_add_u32 {vt[0]}, {vt[1]}, 4, {vt[0]}
    v_lshl_add_u32 {vW4q[0]}, {vPat}, 10, {vt[0]}
    v_add_u32 {vW4q[1]}, 7168, {vW4q[0]}
    v_add_u32 {vW4q[2]}, {2 * 7168}, {vW4q[0]}
    v_add_u32 {vW4q[3]}, {3 * 7168}, {vW4q[0]}
    s_mul_i32 {sW4b}, {sWk}, {86 * 8192}
    s_add_u32 {sW4b}, {sW4b}, {sJ128}""")

    def w4dma(sig0, n, ldsbase, half, key):
        L = []
        for i in range(n):
            pre = ''
            if i == 0:
                pre = f"""s_mul_i32 {t0}, {sWk}, {half}
                s_mul_i32 {t1}, {sWm}, {n * 1024}
                s_add_u32 {t0}, {t0}, {t1}
                s_add_u32 m0, {t0}, {ldsbase}
                s_lshl_b32 {t1}, {t1}, 3
                s_add_u32 {sW4o}, {sW4b}, {t1}
                s_add_u32 {sW4o}, {sW4o}, {2 * sig0 * 8192}
                """
            elif i % 4 == 0:
                pre = f"s_add_u32 m0, m0, 4096\ns_add_u32 {sW4o}, {sW4o}, 32768\n"
            L.append(pre + f"buffer_load_dwordx4 {vW4q[i % 4]}, {sW4}, {sW4o} offen offset:{(i % 4) * 1024} lds")
        L.append(lambda p: tok.__setitem__(key, p.vm_tok()))
        return L
    vX1f = V.get(8)

    def x1f(p):
        p(f"""s_lshl_b32 {t0}, {sG}, 16
        s_lshl_b32 {t1}, {sJ}, 13
        s_add_u32 {t0}, {t0}, {t1}
        s_lshl_b32 {t1}, {sWk}, 12
        s_add_u32 {t0}, {t0}, {t1}
        s_add_u32 {t0}, {t0}, {X1}
        buffer_load_dwordx4 {vX1f[0:4]}, {vSo4}, {sWS}, {t0} offen sc1""")
        tok['x1f'] = p(f"buffer_load_dwordx4 {vX1f[4:8]}, {vSo4}, {sWS}, {t0} offen offset:1024 sc1")
    T = V.get(48, 4)
    later = [aload(k) for k in range(LA0 + 8, 32)] + [x1f] + w4dma(0, 8, R0 + 32768, 16384, 'p0a') + w4dma(8, 5, P0B, 10240, 'p0b')
    toks = {}

    def rd1(k):
        r = vRing[8 * (k % 4):8 * (k % 4) + 8]
        for nh in range(2):
            for hf in range(2):
                toks[k] = P(f"ds_read_b64_tr_b16 {r[4 * nh + 2 * hf:4 * nh + 2 * hf + 2]}, {vC1} offset:{k * 2048 + hf * 512 + nh * 256}")
    sFo = S.get()
    for k in range(3):
        rd1(k)
    for k in range(32):
        if k + 3 < 32:
            rd1(k + 3)
        P.wait(toks[k], at[k])
        r = vRing[8 * (k % 4):8 * (k % 4) + 8]
        for nh in range(2):
            P(f"v_mfma_f32_32x32x16_bf16 {T[16 * nh:16 * nh + 16]}, {r[4 * nh:4 * nh + 4]}, {aA[4 * k:4 * k + 4]}, {'0' if k == 0 else T[16 * nh:16 * nh + 16]}")
        if later:
            P.emit([later.pop(0)])
        if k == 28:
            P(f"""s_lshl_b32 {sFo}, {sJ}, 2
            s_lshr_b32 {t0}, {sG}, 3
            s_add_u32 {sFo}, {sFo}, {t0}
            s_lshl_b32 {sFo}, {sFo}, 7
            s_lshl_b32 {t0}, {sWm}, 6
            s_add_u32 {sFo}, {sFo}, {t0}
            s_add_u32 {sFo}, {sFo}, {FA}""")
            poll_issue(sFo, 16)
    P.emit(later)
    stamp('phase1')
    poll_check(sFo, 16, issued=True)
    P.wait(tok['p0b'])
    P("s_barrier")
    stamp('barA')
    vCv = V.get(16)
    vCr = V.get()
    P(f"""
    v_and_b32 {vt[0]}, 1, {vHi2}
    v_lshlrev_b32 {vt[0]}, 6, {vt[0]}
    v_and_b32 {vt[1]}, 3, {v0}
    v_lshl_add_u32 {vt[0]}, {vt[1]}, 4, {vt[0]}
    v_lshl_add_u32 {vt[0]}, {vPat}, 7, {vt[0]}
    v_xor_b32 {vt[1]}, 16, {vt[0]}
    s_lshl_b32 {t0}, {sW}, 11
    s_add_u32 m0, {t0}, {ZA}
    s_sub_u32 {t1}, {sE}, 1
    s_lshl_b32 {t1}, {t1}, 13
    s_add_u32 {t1}, {t1}, {t0}
    s_add_u32 {t1}, {t1}, {AT}
    buffer_load_dwordx4 {vt[0]}, {sWS}, {t1} offen sc1 lds""")
    tok['z'] = P(f"buffer_load_dwordx4 {vt[1]}, {sWS}, {t1} offen offset:1024 sc1 lds")
    P(f"v_lshrrev_b32 {vCr}, 5, {v0}\nv_lshlrev_b32 {vCr}, 6, {vCr}\nv_add_u32 {vCr}, {CS3}, {vCr}")
    aPre = A.get(48)
    vPa = V.get()
    P(f"s_lshl_b32 {t0}, {sWk}, 14\nv_add_u32 {vPa}, {t0}, {vN}")
    pre = [f"ds_read_b64_tr_b16 {aPre[8 * s + 4 * sl + 2 * hf:8 * s + 4 * sl + 2 * hf + 2]}, {vPa} offset:{32768 + s * 2048 + hf * 512 + sl * 256}"
           for s in range(6) for sl in range(2) for hf in range(2)]

    def gelu_sc(a, cs, o, tmp, s0, s1):
        L = []
        for x in range(2):
            L.append([f"v_fmac_f32 {a[x]}, {cs[x]}, {s0[0]}", f"v_mul_f32 {tmp[x]}, {a[x]}, {a[x]}",
                      f"v_fma_f32 {tmp[x]}, {tmp[x]}, {s0[1]}, {s1[0]}", f"v_mul_f32 {tmp[x]}, {tmp[x]}, {a[x]}",
                      f"v_exp_f32 {tmp[x]}, {tmp[x]}", f"v_fma_f32 {tmp[x]}, {tmp[x]}, {s1[1]}, {s1[1]}",
                      f"v_rcp_f32 {tmp[x]}, {tmp[x]}", f"v_mul_f32 {tmp[x]}, {tmp[x]}, {a[x]}"])
        return zip2(L[0], L[1]) + [f"v_cvt_pk_bf16_f32 {o}, {tmp[0]}, {tmp[1]}"]

    def tile_epi(t, packed, soff, inst0, key, voff=None):
        voff = voff or vSo4
        L = []
        cst = {}

        def rdcs(p):
            for i in range(4):
                cst[i] = p(f"ds_read_b128 {vCv[4 * i:4 * i + 4]}, {vCr} offset:{128 * t + 16 * i}")
        L.append(rdcs)
        a = T[16 * t:16 * t + 16]
        for i in range(4):
            L.append(lambda p, i=i: p.wait(cst[i]))
            if packed:
                L += zip2(gelu_pk(a[4 * i:4 * i + 2], vCv[4 * i:4 * i + 2], vO[2 * i], vTmp[0:2], vS0, vS1),
                          gelu_pk(a[4 * i + 2:4 * i + 4], vCv[4 * i + 2:4 * i + 4], vO[2 * i + 1], vTmp[2:4], vS0, vS1))
            else:
                L += gelu_sc(a[4 * i:4 * i + 2], vCv[4 * i:4 * i + 2], vO[2 * i], vTmp[0:2], vS0, vS1)
                L += gelu_sc(a[4 * i + 2:4 * i + 4], vCv[4 * i + 2:4 * i + 4], vO[2 * i + 1], vTmp[2:4], vS0, vS1)
            if i % 2:
                def st(p, i=i):
                    tok[key] = p(f"buffer_store_dwordx4 {vO[4 * (i // 2):4 * (i // 2) + 4]}, {voff}, {sWS}, {soff} offen offset:{inst0 + 1024 * (i // 2)} {ST}")
                L.append(st)
        return L
    pk2 = opt.get('pk2', 0)
    epi = tile_epi(0, pk2, sH2o, 0, 'h2st') + [f"s_add_u32 {sH2o}, {sH2o}, 4096"] + tile_epi(1, pk2, sH2o, 0, 'h2st')
    side = interleave(pre, w4dma(13, 16, R1, 32768, 'p1'))
    toks = {}

    def rd2(k):
        r = vRing[4 * (k % 8):4 * (k % 8) + 4]
        for hf in range(2):
            toks[k] = P(f"ds_read_b64_tr_b16 {r[2 * hf:2 * hf + 2]}, {vN2} offset:{k * 1024 + hf * 256}")
    for k in range(3):
        rd2(k)
    ne, ns = len(epi), len(side)
    de = dn = 0
    for k in range(32):
        if k + 3 < 32:
            rd2(k + 3)
        P.wait(toks[k])
        P(f"v_mfma_f32_32x32x16_bf16 {T[32:48]}, {vRing[4 * (k % 8):4 * (k % 8) + 4]}, {aA[4 * k:4 * k + 4]}, {'0' if k == 0 else T[32:48]}")
        we, wn = ne * (k + 1) // 32, ns * (k + 1) // 32
        P.emit(side[dn:wn])
        P.emit(epi[de:we])
        de, dn = we, wn
    stamp('phase2')
    P.wait(tok['z'], P.lg_tok())
    P("s_barrier")
    stamp('barB')
    A.put(aA)
    aZ = A.get(32)
    P(f"v_add_u32 {vt[0]}, {ZA}, {vZp}\nv_xor_b32 {vt[1]}, 16, {vt[0]}")
    zr = [f"ds_read_b64_tr_b16 {aZ[16 * pt + 4 * b + 2 * hf:16 * pt + 4 * b + 2 * hf + 2]}, {vt[b & 1]} offset:{pt * 4096 + hf * 512 + (b >> 1) * 256}"
          for b in range(4) for pt in range(2) for hf in range(2)]
    e2 = tile_epi(2, 1, sH2t, 0, 'h2st', vSo4t)
    P.emit(e2[:2] + interleave(e2[2:], zr[:8], lead=4) + zr[8:])
    tok['zr'] = P.lg_tok()
    stamp('h2_stored')
    V.put(vCv, vCr, vN2, vC1, vZp)
    P.emit(w4dma(29, 8, R0, 16384, 'p2') + w4dma(37, 6, R0 + 32768, 16384, 'p3'))

    U = T[0:32]
    P.wait(tok['zr'])
    for b in range(4):
        zr_, zi_ = aZ[4 * b:4 * b + 4], aZ[16 + 4 * b:16 + 4 * b + 4]
        ur, ui = U[8 * b:8 * b + 4], U[8 * b + 4:8 * b + 8]
        P(f"""v_mfma_f32_16x16x32_bf16 {ur}, {zr_}, {aF32[0:4]}, 0
        v_mfma_f32_16x16x32_bf16 {ui}, {zi_}, {aF32[8:12]}, 0
        v_mfma_f32_16x16x32_bf16 {ur}, {zi_}, {aF32[4:8]}, {ur}
        v_mfma_f32_16x16x32_bf16 {ui}, {zr_}, {aF32[12:16]}, {ui}""")
    vV = vRing[0:16]
    for b in range(4):
        for h in range(2):
            ur, ui = U[8 * b + 2 * h:8 * b + 2 * h + 2], U[8 * b + 4 + 2 * h:8 * b + 6 + 2 * h]
            c, s = vTW[4 * b + 2 * h:4 * b + 2 * h + 2], vTW[16 + 4 * b + 2 * h:16 + 4 * b + 2 * h + 2]
            x, y = vTmp[0:2], vTmp[2:4]
            P(f"""v_pk_mul_f32 {x}, {ur}, {c}
            v_pk_mul_f32 {y}, {ui}, {c}
            v_pk_fma_f32 {x}, {ui}, {s}, {x}
            v_pk_fma_f32 {y}, {ur}, {s}, {y} neg_lo:[0,1,0] neg_hi:[0,1,0]
            v_cvt_pk_bf16_f32 {vV[4 * b + h]}, {x[0]}, {x[1]}
            v_cvt_pk_bf16_f32 {vV[4 * b + 2 + h]}, {y[0]}, {y[1]}""")
    P.wait(tok['h2st'])
    P("s_barrier")
    wg_flag(f"s_lshl_b32 {t0}, {sG2}, 7\ns_lshl_b32 {t1}, {sC}, 2\ns_add_u32 {t0}, {t0}, {t1}\ns_add_u32 {t0}, {t0}, {FH2}")
    stamp('h2_flag')
    Y = T[32:48]
    for b in range(4):
        for tau in range(4):
            y = Y[4 * tau:4 * tau + 4]
            P(f"v_mfma_f32_16x16x32_bf16 {y}, {vV[4 * b:4 * b + 4]}, {aF64[16 * b + 4 * tau:16 * b + 4 * tau + 4]}, {'0' if b == 0 else y}")
    sRow, sMask = S.get(), S.get()
    P(f"""
    s_sub_u32 {t0}, 512, {sE}
    s_cmp_eq_u32 {sE}, 256
    s_cselect_b32 {t0}, 0, {t0}
    s_cselect_b32 {t1}, 0, -1
    s_cmp_eq_u32 {sWk}, 0
    s_cselect_b32 {sRow}, {sE}, {t0}
    s_cselect_b32 {sMask}, -1, {t1}
    s_movk_i32 {t0}, 80
    v_mul_u32_u24 {vt[0]}, {t0}, {vLo4}
    v_lshl_add_u32 {vt[0]}, {vHi2}, 3, {vt[0]}
    s_mul_i32 {t1}, {sWk}, 5120
    s_add_u32 {t1}, {t1}, {ZA}
    s_lshl_b32 {t2}, {sWm}, 5
    s_add_u32 {t2}, {t2}, {t1}
    v_add_u32 {vt[0]}, {t2}, {vt[0]}
    v_lshrrev_b32 {vt[1]}, 2, {v0}
    v_mul_u32_u24 {vt[1]}, {t0}, {vt[1]}
    v_and_b32 {vt[2]}, 3, {v0}
    v_lshl_add_u32 {vt[1]}, {vt[2]}, 4, {vt[1]}
    s_mul_i32 {t2}, {sWm}, 2560
    s_add_u32 {t2}, {t2}, {t1}
    v_add_u32 {vt[1]}, {t2}, {vt[1]}""")
    for tau in range(4):
        for h in range(2):
            P(f"v_cvt_pk_bf16_f32 {vO[2 * tau + h]}, {Y[4 * tau + 2 * h]}, {Y[4 * tau + 2 * h + 1]}")
        for h in range(2):
            P(f"v_and_b32 {vO[2 * tau + h]}, {sMask}, {vO[2 * tau + h]}")
        P(f"ds_write_b64 {vt[0]}, {vO[2 * tau:2 * tau + 2]} offset:{1280 * tau}")
    P(f"""
    s_lshl_b32 {t0}, {sRow}, 12
    s_lshl_b32 {t1}, {sWm}, 11
    s_add_u32 {t0}, {t0}, {t1}
    s_add_u32 {t0}, {t0}, {YT}
    s_waitcnt lgkmcnt(0)
    s_barrier""")
    y0 = P(f"ds_read_b128 {vO[0:4]}, {vt[1]}")
    y1 = P(f"ds_read_b128 {vO[4:8]}, {vt[1]} offset:1280")
    P.wait(y0)
    P(f"buffer_store_dwordx4 {vO[0:4]}, {vL16}, {sWS}, {t0} offen sc1")
    P.wait(y1)
    tok['yst'] = P(f"buffer_store_dwordx4 {vO[4:8]}, {vL16}, {sWS}, {t0} offen offset:1024 sc1")
    A.put(aZ, aF32, aF64)
    V.put(vTW)
    stamp('fft_done')
    a0r, a1r = T[0:16], T[16:32]
    P.wait(tok['x1f'])
    for d in range(8):
        P(f"v_lshlrev_b32 {a0r[2 * d]}, 16, {vX1f[d]}\nv_and_b32 {a0r[2 * d + 1]}, 0xffff0000, {vX1f[d]}")
    V.put(vX1f)
    vPb, vPc = V.get(), V.get()
    P(f"""
    s_mul_i32 {t0}, {sWk}, 10240
    s_add_u32 {t0}, {t0}, {P0B}
    v_add_u32 {vPb}, {t0}, {vN}
    s_lshl_b32 {t0}, {sWk}, 15
    s_add_u32 {t0}, {t0}, {R1}
    v_add_u32 {vPc}, {t0}, {vN}
    s_mul_i32 {sAo}, {sG}, {H2G}
    s_mul_i32 {t0}, {sWk}, {43 * 2048}
    s_add_u32 {sAo}, {sAo}, {t0}
    s_add_u32 {sAo}, {sAo}, {H2}""")
    wg_poll(f"s_lshl_b32 {t2}, {sG2}, 7\ns_add_u32 {t2}, {t2}, {FH2}", 16)
    P.wait(tok['p3'])
    P("s_barrier")
    stamp('h2_seen')

    aB = A.get(172)
    bt = {}

    def bload(s):
        bt[s] = P(f"buffer_load_dwordx4 {aB[4 * s:4 * s + 4]}, {vAo}, {sWS}, {sAo} offen offset:{2048 * (s % 2)} sc1")
        if s % 2:
            P(f"s_add_u32 {sAo}, {sAo}, 4096")
    LB = opt.get('lb', 12)
    for s in range(LB):
        bload(s)
    toks = {}

    def w4addr(s):
        if s < 8:
            return vPa, 32768 + s * 2048
        if s < 13:
            return vPb, (s - 8) * 2048
        if s < 29:
            return vPc, (s - 13) * 2048
        if s < 37:
            return vPa, (s - 29) * 2048
        return vPa, 32768 + (s - 37) * 2048

    def rd4(s):
        r = vRing[8 * (s % 4):8 * (s % 4) + 8]
        ad, off = w4addr(s)
        for sl in range(2):
            for hf in range(2):
                toks[s] = P(f"ds_read_b64_tr_b16 {r[4 * sl + 2 * hf:4 * sl + 2 * hf + 2]}, {ad} offset:{off + hf * 512 + sl * 256}")
    vXf32 = V.get(16)
    unp = []
    for d in range(8):
        unp += [f"v_lshlrev_b32 {vXf32[2 * d]}, 16, {vXF[d]}", f"v_and_b32 {vXf32[2 * d + 1]}, 0xffff0000, {vXF[d]}"]
    P.emit(unp)
    V.put(vXF)
    YS = opt.get('ys', 20)
    for s in range(43):
        if s + LB < 43:
            bload(s + LB)
        if 6 <= s + 3 < 43:
            rd4(s + 3)
        P.wait(bt[s], toks.get(s))
        r = aPre[8 * s:8 * s + 8] if s < 6 else vRing[8 * (s % 4):8 * (s % 4) + 8]
        P(f"v_mfma_f32_32x32x16_bf16 {a0r}, {r[0:4]}, {aB[4 * s:4 * s + 4]}, {a0r}")
        P(f"v_mfma_f32_32x32x16_bf16 {a1r}, {r[4:8]}, {aB[4 * s:4 * s + 4]}, {'0' if s == 0 else a1r}")
        if s == 0:
            stamp('g4_first')
            wave_flag(f"s_lshl_b32 {t0}, {sWm}, 9\ns_add_u32 {t0}, {t0}, {sRow}\ns_lshl_b32 {t0}, {t0}, 2\ns_add_u32 {t0}, {t0}, {FY}")
        if s == YS - 6:
            P(f"""s_lshr_b32 {sFo}, {sG}, 4
            s_lshl_b32 {sFo}, {sFo}, 11
            s_lshl_b32 {t0}, {sJ}, 8
            s_add_u32 {sFo}, {sFo}, {t0}
            s_lshl_b32 {t0}, {sW}, 6
            s_add_u32 {sFo}, {sFo}, {t0}
            s_add_u32 {sFo}, {sFo}, {FY}""")
            poll_issue(sFo, 16)
        if s == YS:
            poll_check(sFo, 16, issued=True)
            P(f"""s_barrier
            v_and_b32 {vt[0]}, 1, {vHi2}
            v_lshlrev_b32 {vt[0]}, 6, {vt[0]}
            v_and_b32 {vt[1]}, 3, {v0}
            v_lshl_add_u32 {vt[0]}, {vt[1]}, 4, {vt[0]}
            v_lshl_add_u32 {vt[0]}, {vPat}, 12, {vt[0]}
            v_add_u32 {vt[1]}, {32768 - 1024}, {vt[0]}
            s_lshl_b32 {t0}, {sW}, 11
            s_add_u32 m0, {t0}, {ZA}
            s_lshl_b32 {t0}, {sJ}, 18
            s_lshl_b32 {t1}, {sW}, 16
            s_add_u32 {t0}, {t0}, {t1}
            s_lshl_b32 {t1}, {sG}, 7
            s_add_u32 {t0}, {t0}, {t1}
            s_add_u32 {t0}, {t0}, {YT}
            buffer_load_dwordx4 {vt[0]}, {sWS}, {t0} offen sc1 lds""")
            tok['yt'] = P(f"buffer_load_dwordx4 {vt[1]}, {sWS}, {t0} offen offset:1024 sc1 lds")
            stamp('y_seen')
    stamp('gemm4')
    P(f"""
    s_lshl_b32 {t0}, {sW}, 12
    s_add_u32 {t0}, {t0}, {RED}
    v_add_u32 {vt[0]}, {t0}, {vL16}
    v_xor_b32 {vt[1]}, 8192, {vt[0]}
    v_lshrrev_b32 {vt[2]}, 5, {v0}
    v_lshlrev_b32 {vt[3]}, 11, {vt[2]}
    v_add_u32 {vt[3]}, {vt[3]}, {vR64}
    v_and_b32 {vt[4]}, 1, {vHi2}
    v_lshl_add_u32 {vt[3]}, {vt[4]}, 5, {vt[3]}
    v_and_b32 {vt[4]}, 3, {v0}
    v_lshl_add_u32 {vt[3]}, {vt[4]}, 3, {vt[3]}
    s_lshl_b32 {t0}, {sWk}, 12
    s_lshl_b32 {t1}, {sWm}, 8
    s_add_u32 {t0}, {t0}, {t1}
    s_add_u32 {t0}, {t0}, {ZA}
    v_add_u32 {vt[3]}, {t0}, {vt[3]}""")
    for i in range(4):
        P(f"ds_write_b128 {vt[0]}, {a1r[4 * i:4 * i + 4]} offset:{1024 * i}")
    P(f"""
    v_and_b32 {vt[4]}, 31, {v0}
    v_lshlrev_b32 {vt[4]}, 10, {vt[4]}
    v_lshl_add_u32 {vt[4]}, {vt[2]}, 5, {vt[4]}
    s_lshl_b32 {t0}, {sG}, 1
    s_add_u32 {t0}, {t0}, {sWm}
    s_lshl_b32 {t0}, {t0}, 15
    s_lshl_b32 {t1}, {sWk}, 6
    s_add_u32 {t0}, {t0}, {t1}
    s_add_u32 {t0}, {t0}, {sJ128}""")
    P.wait(tok['yt'], P.lg_tok())
    P("s_barrier")
    stamp('barD')
    pr = T[32:48]
    vY = vRing[0:8]
    vSf = vRing[8:24]
    rt = []
    for i in range(4):
        P(f"ds_read_b128 {pr[4 * i:4 * i + 4]}, {vt[1]} offset:{1024 * i}")
        rt.append(P(f"ds_read_b64_tr_b16 {vY[2 * i:2 * i + 2]}, {vt[3]} offset:{(i >> 1) * 1024 + (i & 1) * 512}"))
    vNl = vS0
    P(f"v_mov_b32 {vNl[0]}, {hx(-math.log2(math.e))}")
    for i in range(4):
        P.wait(rt[i])
        seqs = []
        for h in range(2):
            d = 2 * i + h
            a, p_, tmp, sf, xf = a0r[2 * d:2 * d + 2], pr[2 * d:2 * d + 2], vTmp[2 * h:2 * h + 2], vSf[2 * d:2 * d + 2], vXf32[2 * d:2 * d + 2]
            seqs.append([f"v_pk_add_f32 {a}, {a}, {p_}",
                         f"v_lshlrev_b32 {sf[0]}, 16, {vY[d]}",
                         f"v_pk_mul_f32 {tmp}, {a}, {vNl} op_sel_hi:[1,0]",
                         f"v_and_b32 {sf[1]}, 0xffff0000, {vY[d]}",
                         f"v_exp_f32 {tmp[0]}, {tmp[0]}", f"v_exp_f32 {tmp[1]}, {tmp[1]}",
                         f"v_pk_mul_f32 {a}, {a}, {sf}",
                         f"v_pk_add_f32 {tmp}, {tmp}, 1.0 op_sel_hi:[1,0]",
                         f"v_rcp_f32 {tmp[0]}, {tmp[0]}", f"v_rcp_f32 {tmp[1]}, {tmp[1]}",
                         f"v_pk_fma_f32 {a}, {a}, {tmp}, {xf}",
                         f"v_cvt_pk_bf16_f32 {vO[d]}, {a[0]}, {a[1]}"])
        P.emit(zip2(*seqs))
        if i % 2:
            P(f"buffer_store_dwordx4 {vO[4 * (i // 2):4 * (i // 2) + 4]}, {vt[4]}, {sOUT}, {t0} offen offset:{16 * (i // 2)}")
    stamp('out_stored')

    le = P.label('L_noepoch')
    lp, lq = P.label('L_ep'), P.label('L_epd')
    P(f"""
    s_add_u32 {t0}, s2, {sW}
    s_cmp_lg_u32 {t0}, 0
    s_cbranch_scc1 {le}
    v_lshrrev_b32 {vt[0]}, 5, {v0}
    v_lshlrev_b32 {vt[0]}, 9, {vt[0]}
    v_and_b32 {vt[1]}, 31, {v0}
    v_lshl_add_u32 {vt[0]}, {vt[1]}, 2, {vt[0]}
    s_mov_b32 {t1}, {FA}
    s_mov_b32 {sNZ}, {SPIN}
    {lp}:""")
    for i in range(4):
        P(f"buffer_load_dword {vt[2 + i]}, {vt[0]}, {sWS}, {t1} offen offset:{1024 * i} sc1", optional=True)
    P("s_waitcnt vmcnt(0)")
    for i in range(4):
        P(f"v_xor_b32 {vt[2 + i]}, {sNN[0]}, {vt[2 + i]}")
    P(f"""
    v_or_b32 {vt[2]}, {vt[2]}, {vt[3]}
    v_or3_b32 {vt[2]}, {vt[2]}, {vt[4]}, {vt[5]}
    v_cmp_ne_u32 vcc, 0, {vt[2]}
    s_cbranch_vccz {lq}
    s_sub_u32 {sNZ}, {sNZ}, 1
    s_cbranch_scc0 {lp}
    {lq}:
    v_mov_b32 {vt[0]}, {E_OFF}
    v_mov_b32 {vt[1]}, {sNN[0]}
    s_mov_b64 exec, 1""")
    P(f"buffer_store_dword {vt[1]}, {vt[0]}, {sWS}, 0 offen sc1", optional=True)
    P(f"s_mov_b64 exec, -1\n{le}:")
    if stamps:
        P("s_waitcnt vmcnt(0)")
        r = S.get(2, 2)
        stamps.append(('end', r))
        P(f"""s_memrealtime {r}
        s_waitcnt lgkmcnt(0)
        s_lshl_b32 {t0}, s2, 2
        s_add_u32 {t0}, {t0}, {sW}
        s_lshl_b32 {t0}, {t0}, 7
        s_add_u32 {t0}, {t0}, {TS}
        v_mov_b32 {vt[0]}, 0
        s_mov_b64 exec, 1""")
        for n, (nm, r) in enumerate(stamps):
            P(f"v_mov_b32 {vt[1]}, {r[0]}\nbuffer_store_dword {vt[1]}, {vt[0]}, {sWS}, {t0} offen offset:{4 * n}")
    P("L_end:\ns_endpgm")

    errs = P.check_waits()
    npad = P.pad_hazards()
    info = dict(vgpr=V.hi, agpr=A.hi, sgpr=S.hi, npad=npad, nins=len(P.ins), errs=errs, stamps=[n for n, _ in stamps])
    return P, info


HEADER = """; Fused FNet Fourier mixing + spatial-shift / channel MLP, one persistent launch.
; 256 workgroups (one per CU), 4 waves each.  Generated by work/gen.py (hand-written instruction streams).
; @launch grid=(256,1,1) block=(256,1,1) lds=%d
""" % LDS_BYTES


def file_text(P):
    return (HEADER + '.amdgcn_target "amdgcn-amd-amdhsa--gfx950"\n.text\n' +
            f".globl {KNAME}\n.p2align 8\n.type {KNAME},@function\n{KNAME}:\n" + P.text() +
            f""".section .rodata,"a"
.p2align 6
.amdhsa_kernel {KNAME}
  .amdhsa_next_free_vgpr 512
  .amdhsa_next_free_sgpr 102
  .amdhsa_accum_offset 256
  .amdhsa_group_segment_fixed_size 0
  .amdhsa_kernarg_size 104
  .amdhsa_user_sgpr_count 2
  .amdhsa_user_sgpr_kernarg_segment_ptr 1
  .amdhsa_system_sgpr_workgroup_id_x 1
.end_amdhsa_kernel
""")


if __name__ == '__main__':
    out = sys.argv[1]
    opt = {}
    for a in sys.argv[2:]:
        k, v = a.split('=')
        opt[k] = v.split(',') if k == 'prof' else int(v)
    P, info = build(opt)
    open(out, 'w').write(file_text(P))
    open(out[:-2] + '.txt', 'w').write('\n'.join(info['stamps']))
    for e in info['errs']:
        print('WAIT-ERR', e)
    print({k: v for k, v in info.items() if k != 'errs'})
```

```python
import sys, math, struct
from kg import *

KNAME = "recurrent_scan__spectral_fnet__mixer_s_mlp__prompt_kernel"


def f2u(x):
    return struct.unpack('<I', struct.pack('<f', x))[0]


def hx(x):
    return hex(f2u(x))


E_OFF = 0
FH, FX, FH2, FA, FY, XID = 0x1000, 0x2000, 0x3000, 0x4000, 0x5000, 0x6000
STATS = 0x10000
HS, X1, H2, AT, YT, TS = 0x100000, 0x300000, 0x500000, 0xB00000, 0xD00000, 0x1000000
H2G = 172 * 1024
WS_BYTES = 0x10000000
R0, R1, R2 = 0, 65536, 131072
TIMG, EX = 147456, 156672
P0B, ZA = 131072, 151552
CS1, SM, SR, CS3 = 161792, 162048, 162336, 162624
RED = P0B
LDS_BYTES = 163840
SPIN = 60000


def build(opt):
    prof = list(opt.get('prof', []))
    P = Prog()
    V = Alloc('v', 256, 1)
    A = Alloc('a', 256)
    S = Alloc('s', 102, 40)
    sX, sW1, sW2, sW3, sW4, sWD, sWS, sOUT = [R('s', 4 + 4 * i, 4) for i in range(8)]
    sHID = R('s', 36, 4)
    v0 = R('v', 0, 1)
    stamps = []
    if prof:
        sSt = S.get(8, 2)
        vStamp = V.get()

    def stamp(name):
        if name in prof or 'all' in prof:
            n = len(stamps)
            if n >= 3:
                P(f"v_writelane_b32 {vStamp}, {sSt[2 * ((n - 3) % 4)]}, {n - 3}")
            stamps.append((name, None))
            P(f"{'s_memtime' if opt.get('cyc') else 's_memrealtime'} {sSt[2 * (n % 4):2 * (n % 4) + 2]}")

    ST = 'sc1'

    sW, sG, sJ, sSH, sC, sNZ = [S.get() for _ in range(6)]
    sNN = S.get(2, 2)
    sInv = S.get(2, 2)
    sFl = S.get(16, 4)
    t0, t1, t2, t3 = [S.get() for _ in range(4)]
    sOnes = S.get()
    stamp('entry')
    P(f"""
    s_cmp_ge_u32 s2, 256
    s_cbranch_scc1 L_end
    s_load_dwordx2 {sX[0:2]}, s[0:1], 0
    s_load_dwordx2 {sW1[0:2]}, s[0:1], 48
    s_load_dwordx2 {sWS[0:2]}, s[0:1], 96
    s_load_dwordx4 {sHID}, s[0:1], 24
    """)
    vt = [V.get() for _ in range(8)]
    vL16, vLo4, vHi2 = V.get(), V.get(), V.get()
    P(f"""
    v_lshrrev_b32 {vt[0]}, 6, {v0}
    v_and_b32 {v0}, 63, {v0}
    s_and_b32 {t0}, s2, 7
    v_readfirstlane_b32 {sW}, {vt[0]}
    s_lshr_b32 {t1}, s2, 3
    s_lshl_b32 {t0}, {t0}, 2
    s_lshr_b32 {t2}, {t1}, 3
    s_add_u32 {sG}, {t0}, {t2}
    s_and_b32 {sJ}, {t1}, 7
    v_lshlrev_b32 {vL16}, 4, {v0}
    s_lshr_b32 {t0}, {sJ}, 2
    s_add_u32 {t0}, {t0}, 1
    s_sub_u32 {t1}, 0, {t0}
    s_bitcmp1_b32 {sJ}, 1
    s_cselect_b32 {sSH}, {t1}, {t0}
    s_mov_b32 {sX[2]}, {2048 * 1024}
    s_mov_b32 {sX[3]}, 0x20000
    s_mov_b32 {sW1[2]}, {512 * 1024}
    s_mov_b32 {sW1[3]}, 0x20000
    s_mov_b32 {sWS[2]}, {WS_BYTES}
    s_mov_b32 {sWS[3]}, 0x20000
    s_mov_b32 {sWD[2]}, {512 * 1024}
    s_mov_b32 {sWD[3]}, 0x20000
    """)
    sT0 = S.get()
    P(f"""
    s_lshl_b32 {sT0}, {sG}, 6
    s_sub_u32 {sT0}, {sT0}, {sSH}
    s_lshl_b32 {t0}, {sW}, 4
    s_add_u32 {sT0}, {sT0}, {t0}
    s_lshl_b32 {t3}, {sW}, 14
    s_mov_b32 m0, {t3}
    s_and_b32 {t1}, {sT0}, 2047
    s_lshl_b32 {t1}, {t1}, 10
    v_and_b32 {vLo4}, 15, {v0}
    v_lshrrev_b32 {vHi2}, 4, {v0}
    s_waitcnt lgkmcnt(0)
    """)
    stamp('kernarg')
    main = []
    for rho in range(16):
        L = []
        va = vt[rho % 2]
        if rho == 0:
            L.append(f"buffer_load_dwordx4 {vL16}, {sX}, {t1} offen lds")
        elif rho < 4 or rho >= 12:
            L.append(f"s_add_u32 m0, {t3}, {rho * 1024}\ns_add_u32 {t1}, {sT0}, {rho}\ns_and_b32 {t1}, {t1}, 2047\ns_lshl_b32 {t1}, {t1}, 10")
            L.append(f"v_xor_b32 {va}, {rho * 16}, {vL16}\nbuffer_load_dwordx4 {va}, {sX}, {t1} offen lds")
        else:
            if rho % 4 == 0:
                L.append(f"s_add_u32 m0, {t3}, {rho * 1024}\ns_add_u32 {t1}, {sT0}, {rho}\ns_lshl_b32 {t1}, {t1}, 10")
            L.append(f"v_xor_b32 {va}, {rho * 16}, {vL16}\nbuffer_load_dwordx4 {va}, {sX}, {t1} offen offset:{(rho % 4) * 1024} lds")
        main.append('\n'.join(L))
    P.emit(main[:8])
    P(f"""
    s_load_dwordx2 {sW2[0:2]}, s[0:1], 56
    s_load_dwordx2 {sW3[0:2]}, s[0:1], 64
    s_load_dwordx2 {sW4[0:2]}, s[0:1], 72
    s_load_dwordx2 {sOUT[0:2]}, s[0:1], 80
    s_load_dword {sNN[0]}, {sWS[0:2]}, {E_OFF}
    s_bitcmp1_b32 {sW}, 0
    s_cselect_b32 {sWD[0]}, {sHID[2]}, {sHID[0]}
    s_cselect_b32 {sWD[1]}, {sHID[3]}, {sHID[1]}
    """)
    main = main[8:]
    sOE = S.get()
    main.append(f"""
    s_cmp_gt_i32 {sSH}, 0
    s_cselect_b32 {sOE}, 64, -2
    s_and_b32 {t0}, {sW}, 1
    s_add_u32 {sOE}, {sOE}, {t0}
    s_lshl_b32 {t0}, {t0}, 10
    s_add_u32 m0, {t0}, {EX}
    s_lshl_b32 {t1}, {sG}, 6
    s_sub_u32 {t1}, {t1}, {sSH}
    s_add_u32 {t1}, {t1}, {sOE}
    s_and_b32 {t1}, {t1}, 2047
    s_lshl_b32 {t1}, {t1}, 10
    s_and_b32 {t0}, {sOE}, 15
    s_lshl_b32 {t0}, {t0}, 4
    v_xor_b32 {vt[0]}, {t0}, {vL16}
    buffer_load_dwordx4 {vt[0]}, {sX}, {t1} offen lds""")
    tok = {}
    main.append(lambda p: tok.__setitem__('x', p.vm_tok()))
    vWq = V.get(4)
    vPat = V.get()
    vR64 = V.get()
    main.append(f"""
    v_lshrrev_b32 {vt[2]}, 5, {v0}
    v_bfe_u32 {vt[3]}, {v0}, 2, 2
    v_lshl_add_u32 {vPat}, {vt[2]}, 2, {vt[3]}
    v_lshlrev_b32 {vR64}, 6, {vt[3]}
    v_and_b32 {vt[2]}, 1, {vHi2}
    v_lshlrev_b32 {vt[2]}, 6, {vt[2]}
    v_and_b32 {vt[3]}, 3, {v0}
    v_lshl_add_u32 {vt[2]}, {vt[3]}, 4, {vt[2]}
    v_lshl_add_u32 {vWq[0]}, {vPat}, 10, {vt[2]}
    v_xor_b32 {vWq[1]}, 16, {vWq[0]}
    v_add_u32 {vWq[1]}, 7168, {vWq[1]}
    v_add_u32 {vWq[2]}, {2 * 7168}, {vWq[0]}
    v_add_u32 {vWq[3]}, {2 * 7168}, {vWq[1]}""")
    sJ128 = S.get()

    def wtile_dma(srd, ldsbase, key):
        L = []
        for ch in range(4):
            if ch == 0:
                pre = f"""s_lshl_b32 {sJ128}, {sJ}, 7
                s_lshl_b32 {t1}, {sW}, 15
                s_add_u32 {t1}, {t1}, {sJ128}
                s_lshl_b32 {t0}, {sW}, 12
                s_add_u32 m0, {t0}, {ldsbase}
                """
            else:
                pre = f"s_add_u32 m0, m0, 16384\ns_add_u32 {t1}, {t1}, {4 * 32768}\n"
            for q in range(4):
                L.append((pre if q == 0 else '') + f"buffer_load_dwordx4 {vWq[q]}, {srd}, {t1} offen offset:{q * 1024} lds")
            L.append(lambda p, ch=ch: tok.__setitem__((key, ch), p.vm_tok()))
        return L
    main += wtile_dma(sW1, R1, 'w1')
    main.append(f"""
    v_xor_b32 {vt[2]}, {vLo4}, {vHi2}
    v_lshlrev_b32 {vt[2]}, 4, {vt[2]}
    v_lshl_add_u32 {vt[2]}, {vHi2}, 11, {vt[2]}
    s_cmp_lt_u32 {sW}, 2
    s_cselect_b32 {t0}, 2, 1
    s_lshl_b32 {t1}, {sJ}, 5
    s_add_u32 {t1}, {t1}, {t0}
    s_lshl_b32 {t1}, {t1}, 10
    s_lshl_b32 {t0}, {sW}, 12
    s_add_u32 m0, {t0}, {R2}
    s_nop 0
    buffer_load_dwordx4 {vt[2]}, {sWD}, {t1} offen lds""")
    for i in range(1, 4):
        main.append(f"""v_xor_b32 {vt[i % 2]}, {64 * i}, {vt[2]}
        v_add_u32 {vt[i % 2]}, {7168 * i}, {vt[i % 2]}
        buffer_load_dwordx4 {vt[i % 2]}, {sWD}, {t1} offen offset:{i * 1024} lds""")
    main.append(lambda p: tok.__setitem__('wd', p.vm_tok()))

    aF32 = A.get(16)
    aF64 = A.get(64)
    vTW = V.get(32)
    sEps = S.get()
    cg = []
    g0, g1, g2, g3 = [V.get() for _ in range(4)]
    gc, gs = V.get(8), V.get(8)
    gp = V.get(4)
    cg += f"""s_and_b32 {sEps}, {sW}, 1
    s_lshl_b32 {sEps}, {sEps}, 4
    v_add_u32 {g0}, {sEps}, {vLo4}
    s_lshr_b32 {sEps}, {sW}, 1
    s_mul_i32 {sEps}, {sEps}, 0x80008000
    v_cvt_f32_u32 {g0}, {g0}
    v_lshrrev_b32 {g1}, 1, {vHi2}
    v_and_b32 {g2}, 1, {vHi2}
    v_lshlrev_b32 {g1}, 4, {g1}
    v_lshl_add_u32 {g1}, {g2}, 2, {g1}
    v_cvt_f32_u32 {g1}, {g1}
    v_mul_f32 {g2}, {hx(1 / 2048)}, {g0}""".split('\n')
    for beta in range(4):
        off = 32 * (beta >> 1) + 8 * (beta & 1)
        for i in range(4):
            cg += [f"v_add_f32 {g3}, {hx(off + i)}, {g1}", f"v_mul_f32 {g3}, {g3}, {g2}",
                   f"v_cos_f32 {vTW[4 * beta + i]}, {g3}", f"v_sin_f32 {vTW[16 + 4 * beta + i]}, {g3}"]
    cg += [f"v_lshlrev_b32 {g3}, 3, {vHi2}", f"v_cvt_f32_u32 {g3}, {g3}", f"v_mul_f32 {g2}, {hx(1 / 32)}, {g0}"]
    for jj in range(8):
        cg += [f"v_add_f32 {g0}, {hx(jj)}, {g3}", f"v_mul_f32 {g0}, {g0}, {g2}", f"v_fract_f32 {g0}, {g0}",
               f"v_cos_f32 {gc[jj]}, {g0}", f"v_sin_f32 {gs[jj]}, {g0}"]
    for d in range(4):
        cg += [f"v_cvt_pk_bf16_f32 {gp[0]}, {gc[2 * d]}, {gc[2 * d + 1]}",
               f"v_cvt_pk_bf16_f32 {gp[1]}, {gs[2 * d]}, {gs[2 * d + 1]}",
               f"v_accvgpr_write_b32 {aF32[d]}, {gp[0]}",
               f"v_xor_b32 {gp[2]}, {sEps}, {gp[1]}",
               f"v_xor_b32 {gp[0]}, {sEps}, {gp[0]}",
               f"v_xor_b32 {gp[1]}, 0x80008000, {gp[1]}",
               f"v_accvgpr_write_b32 {aF32[4 + d]}, {gp[2]}",
               f"v_accvgpr_write_b32 {aF32[8 + d]}, {gp[0]}",
               f"v_accvgpr_write_b32 {aF32[12 + d]}, {gp[1]}"]
    cg += [f"v_cvt_f32_u32 {g2}, {vLo4}", f"v_mul_f32 {g2}, {hx(1 / 64)}, {g2}"]
    for beta in range(4):
        off = 32 * (beta >> 1) + 8 * (beta & 1)
        for i in range(4):
            cg += [f"v_add_f32 {g0}, {hx(off + i)}, {g1}", f"v_mul_f32 {g0}, {g0}, {g2}", f"v_fract_f32 {g0}, {g0}",
                   f"v_cos_f32 {gc[i]}, {g0}", f"v_sin_f32 {gs[i]}, {g0}"]
        for tau in range(4):
            def cs(i, kind):
                n = (i * tau) % 4
                c, s = gc[i], gs[i]
                return ([f"{c}", f"-{s}", f"-{c}", f"{s}"] if kind == 'c' else [f"{s}", f"{c}", f"-{s}", f"-{c}"])[n]
            base = 16 * beta + 4 * tau
            for d, (kind, i) in enumerate((('c', 0), ('c', 2), ('s', 0), ('s', 2))):
                cg.append(f"v_cvt_pk_bf16_f32 {gp[d]}, {cs(i, kind)}, {cs(i + 1, kind)}")
            for d in range(4):
                cg.append(f"v_accvgpr_write_b32 {aF64[base + d]}, {gp[d]}")
    P.emit(interleave(main, cg, lead=2))
    V.put(g0, g1, g2, g3, gc, gs, gp)
    stamp('issued')
    sE, sG2 = S.get(), S.get()
    P(f"""
    s_waitcnt lgkmcnt(0)
    s_add_u32 {sNN[0]}, {sNN[0]}, 1
    s_mov_b32 {sNN[1]}, {sNN[0]}
    s_mov_b32 {sW2[2]}, {512 * 1024}
    s_mov_b32 {sW2[3]}, 0x20000
    s_mov_b32 {sW3[2]}, {512 * 2752}
    s_mov_b32 {sW3[3]}, 0x20000
    s_mov_b32 {sW4[2]}, {1376 * 1024}
    s_mov_b32 {sW4[3]}, 0x20000
    s_mov_b32 {sOUT[2]}, {2048 * 1024}
    s_mov_b32 {sOUT[3]}, 0x20000
    s_mov_b32 {sOnes}, 0x3f803f80
    s_lshr_b32 {sG2}, {sG}, 1
    s_and_b32 {t0}, {sG}, 1
    s_lshl_b32 {t0}, {t0}, 3
    s_add_u32 {sC}, {t0}, {sJ}
    s_lshl_b32 {sE}, {sJ}, 5
    s_add_u32 {sE}, {sE}, {sG}
    s_add_u32 {sE}, {sE}, 1
    """)
    vDummy = V.get()
    if opt.get('warm', 1):
        la, lb, lc, ld = [P.label('L_warm') for _ in range(4)]
        P(f"""
        v_lshlrev_b32 {vt[0]}, 7, {v0}
        s_mul_i32 {t1}, s2, {43 * 128}
        s_cmp_eq_u32 {sW}, 0
        s_cbranch_scc0 {la}
        s_lshl_b32 {t1}, s2, 11
        s_mov_b64 exec, 0xffff
        """)
        P(f"buffer_load_dword {vDummy}, {vt[0]}, {sW2}, {t1} offen", optional=True)
        P(f"""s_branch {ld}
        {la}:
        s_mov_b32 exec_hi, 0x7ff
        s_cmp_eq_u32 {sW}, 1
        s_cbranch_scc0 {lb}""")
        P(f"buffer_load_dword {vDummy}, {vt[0]}, {sW3}, {t1} offen", optional=True)
        P(f"""s_branch {ld}
        {lb}:
        s_cmp_eq_u32 {sW}, 2
        s_cbranch_scc0 {lc}""")
        P(f"buffer_load_dword {vDummy}, {vt[0]}, {sW4}, {t1} offen", optional=True)
        P(f"""s_branch {ld}
        {lc}:
        s_mov_b64 exec, 0x3f
        v_lshlrev_b32 {vt[0]}, 12, {v0}
        s_and_b32 {t1}, s2, 31
        s_lshl_b32 {t1}, {t1}, 7
        s_add_u32 {t1}, {t1}, {FH}""")
        P(f"buffer_load_dword {vDummy}, {vt[0]}, {sWS}, {t1} offen sc1")
        P(f"{ld}:\ns_mov_b64 exec, -1")

    vX = V.get(64)
    vEx = V.get(4)
    vA0 = V.get(4)
    P(f"""
    v_xor_b32 {vt[0]}, {vHi2}, {vLo4}
    v_lshlrev_b32 {vt[0]}, 4, {vt[0]}
    v_lshl_add_u32 {vt[0]}, {vLo4}, 10, {vt[0]}
    v_add_u32 {vA0[0]}, {t3}, {vt[0]}
    v_xor_b32 {vA0[1]}, 64, {vA0[0]}
    v_xor_b32 {vA0[2]}, 128, {vA0[0]}
    v_xor_b32 {vA0[3]}, 192, {vA0[0]}
    s_and_b32 {t0}, {sW}, 1
    s_lshl_b32 {t0}, {t0}, 10
    s_add_u32 {t0}, {t0}, {EX}
    v_add_u32 {vt[1]}, {t0}, {vL16}
    """)
    P(f"""
    v_add_u32 {vt[2]}, {sT0}, {vLo4}
    v_cmp_lt_u32 {sInv}, 2047, {vt[2]}""".replace("2047, ", "vcc_lo, ") if False else f"""
    v_add_u32 {vt[2]}, {sT0}, {vLo4}
    v_cmp_lt_u32 vcc, 2047, {vt[2]}
    s_mov_b64 {sInv}, vcc""")
    ss = V.get(2); qq = V.get(2); es = V.get(); eq = V.get()
    P(f"""
    v_mov_b32 {ss[0]}, 0
    v_mov_b32 {ss[1]}, 0
    v_mov_b32 {qq[0]}, 0
    v_mov_b32 {qq[1]}, 0
    v_mov_b32 {es}, 0
    v_mov_b32 {eq}, 0""")
    P.wait(tok['x'])
    stamp('x_landed')
    xt = []
    for k in range(16):
        xt.append(P(f"ds_read_b128 {vX[4 * k:4 * k + 4]}, {vA0[k % 4]} offset:{256 * (k // 4)}"))
        if k == 11:
            pass
    te = P(f"ds_read_b128 {vEx}, {vt[1]}")
    for k in range(16):
        P.wait(xt[k])
        for d in range(4):
            P(f"v_dot2c_f32_bf16 {ss[d % 2]}, {sOnes}, {vX[4 * k + d]}\nv_dot2c_f32_bf16 {qq[d % 2]}, {vX[4 * k + d]}, {vX[4 * k + d]}")
    P.wait(te)
    for d in range(4):
        P(f"v_dot2c_f32_bf16 {es}, {sOnes}, {vEx[d]}\nv_dot2c_f32_bf16 {eq}, {vEx[d]}, {vEx[d]}")
    P(f"v_add_f32 {ss[0]}, {ss[0]}, {ss[1]}\nv_add_f32 {qq[0]}, {qq[0]}, {qq[1]}")
    four = [ss[0], qq[0], es, eq]
    for op in ('v_permlane32_swap_b32', 'v_permlane16_swap_b32'):
        for n, r in enumerate(four):
            P(f"v_mov_b32 {vt[4 + n]}, {r}")
        for n, r in enumerate(four):
            P(f"{op} {r}, {vt[4 + n]}")
        for n, r in enumerate(four):
            P(f"v_add_f32 {r}, {r}, {vt[4 + n]}")
    for rot in (8, 4, 2, 1):
        for r in (es, eq):
            P(f"v_add_f32_dpp {r}, {r}, {r} row_ror:{rot} row_mask:0xf bank_mask:0xf")
    vS0 = V.get(2)
    vS1 = V.get(2)
    C0 = -2.0 * math.sqrt(2.0 / math.pi) * math.log2(math.e)
    C1 = C0 * 0.044715
    mean, var, r1 = ss[0], qq[0], ss[1]
    P(f"""
    v_mul_f32 {mean}, {hx(1 / 512)}, {mean}
    v_mul_f32 {es}, {hx(1 / 512)}, {es}
    v_mul_f32 {var}, {hx(1 / 512)}, {var}
    v_mul_f32 {eq}, {hx(1 / 512)}, {eq}
    v_fma_f32 {var}, -{mean}, {mean}, {var}
    v_fma_f32 {eq}, -{es}, {es}, {eq}
    v_max_f32 {var}, 0, {var}
    v_max_f32 {eq}, 0, {eq}
    v_add_f32 {r1}, {hx(1e-5)}, {var}
    v_add_f32 {eq}, {hx(1e-5)}, {eq}
    v_rsq_f32 {r1}, {r1}
    v_rsq_f32 {eq}, {eq}
    s_lshl_b32 {t0}, {sW}, 4
    s_sub_u32 {t0}, {t0}, {sSH}
    s_lshl_b32 {t0}, {t0}, 2
    s_add_u32 {t0}, {t0}, {SM + 16}
    v_lshl_add_u32 {vt[4]}, {vLo4}, 2, {t0}
    s_sub_u32 {t0}, {sOE}, {sSH}
    s_lshl_b32 {t0}, {t0}, 2
    s_add_u32 {t0}, {t0}, {SM + 16}
    v_mov_b32 {vt[5]}, {t0}
    s_mov_b64 exec, 0xffff
    ds_write_b32 {vt[4]}, {mean}
    ds_write_b32 {vt[4]}, {r1} offset:{SR - SM}
    s_mov_b64 exec, 1
    ds_write_b32 {vt[5]}, {es}
    ds_write_b32 {vt[5]}, {eq} offset:{SR - SM}
    s_mov_b64 exec, -1
    v_mul_f32 {var}, {var}, {r1}
    v_fma_f32 {var}, {var}, {r1}, {qq[1]}""".replace(f"v_fma_f32 {var}, {var}, {r1}, {qq[1]}", f"v_mul_f32 {var}, {var}, {r1}"))
    P(f"""
    v_add_f32 {var}, {hx(1e-5)}, {var}
    v_rsq_f32 {var}, {var}
    v_sub_f32 {vS0[0]}, 0, {mean}
    v_mul_f32 {var}, {var}, {r1}
    v_rcp_f32 {vS1[1]}, {var}
    v_mul_f32 {vS1[0]}, {hx(C0)}, {var}
    v_mul_f32 {r1}, {var}, {var}
    v_mul_f32 {r1}, {r1}, {var}
    v_mul_f32 {vS0[1]}, {hx(C1)}, {r1}""")
    V.put(ss, qq, es, eq, vEx)
    vU0, vXr, vXf, vSt = V.get(), V.get(), V.get(), V.get()

    def unshifted_base(dst, key, urow):
        return f"""
        v_add_u32 {key}, {sSH}, {urow}
        v_and_b32 {vt[7]}, 1, {key}
        v_lshlrev_b32 {vt[7]}, 10, {vt[7]}
        v_add_u32 {vt[7]}, {EX}, {vt[7]}
        v_lshlrev_b32 {dst}, 10, {key}
        v_cmp_gt_u32 vcc, 64, {key}
        v_and_b32 {key}, 15, {key}
        v_cndmask_b32 {dst}, {vt[7]}, {dst}, vcc"""
    P(f"s_lshl_b32 {t0}, {sW}, 4\nv_add_u32 {vt[4]}, {t0}, {vLo4}")
    P(f"v_lshlrev_b32 {vSt}, 2, {vt[4]}\nv_add_u32 {vSt}, {SM + 16}, {vSt}")
    P(unshifted_base(vt[5], vt[6], vt[4]))
    P(f"""
    v_xor_b32 {vt[4]}, {vHi2}, {vt[6]}
    v_lshl_add_u32 {vU0}, {vt[4]}, 4, {vt[5]}
    s_lshr_b32 {t0}, {sW}, 1
    s_lshl_b32 {t0}, {t0}, 2
    s_and_b32 {t1}, {sW}, 1
    s_add_u32 {t0}, {t0}, {t1}
    s_lshl_b32 {t1}, {sJ}, 3
    s_add_u32 {t0}, {t0}, {t1}
    v_and_b32 {vt[4]}, 2, {vHi2}
    v_add_u32 {vt[4]}, {t0}, {vt[4]}
    v_xor_b32 {vt[4]}, {vt[4]}, {vt[6]}
    v_lshl_add_u32 {vXr}, {vt[4]}, 4, {vt[5]}
    v_and_b32 {vt[4]}, 1, {vHi2}
    v_lshl_add_u32 {vXr}, {vt[4]}, 3, {vXr}
    s_and_b32 {t0}, {sW}, 1
    s_lshl_b32 {t0}, {t0}, 5
    v_and_b32 {vt[4]}, 31, {v0}
    v_add_u32 {vt[4]}, {t0}, {vt[4]}""")
    P(unshifted_base(vt[5], vt[6], vt[4]))
    P(f"""
    s_lshr_b32 {t0}, {sW}, 1
    s_lshl_b32 {t0}, {t0}, 2
    s_add_u32 {t0}, {t0}, {t1}
    v_and_b32 {vt[4]}, 2, {vHi2}
    v_add_u32 {vt[4]}, {t0}, {vt[4]}
    v_xor_b32 {vt[4]}, {vt[4]}, {vt[6]}
    v_lshl_add_u32 {vXf}, {vt[4]}, 4, {vt[5]}""")
    vB = V.get(4)
    vZp = V.get()
    P(f"""
    v_and_b32 {vt[4]}, 2, {v0}
    v_and_b32 {vt[5]}, 1, {vHi2}
    v_xor_b32 {vt[4]}, {vt[4]}, {vt[5]}
    v_lshlrev_b32 {vt[4]}, 4, {vt[4]}
    v_and_b32 {vt[5]}, 1, {v0}
    v_lshl_add_u32 {vt[4]}, {vt[5]}, 3, {vt[4]}
    v_add_u32 {vt[4]}, {vt[4]}, {vR64}
    v_lshl_add_u32 {vZp}, {vHi2}, 10, {vt[4]}
    s_and_b32 {t0}, {sW}, 1
    s_lshl_b32 {t0}, {t0}, 4
    s_lshr_b32 {t1}, {sW}, 1
    s_lshl_b32 {t1}, {t1}, 8
    s_add_u32 {t0}, {t0}, {t1}
    v_xor_b32 {vB[0]}, {t0}, {vZp}
    v_add_u32 {vB[0]}, {R1}, {vB[0]}
    v_xor_b32 {vB[1]}, 16, {vB[0]}
    v_xor_b32 {vB[2]}, 256, {vB[0]}
    v_xor_b32 {vB[3]}, 272, {vB[0]}""")
    vOnes = V.get(4)
    for d in range(4):
        P(f"v_mov_b32 {vOnes[d]}, {sOnes}")
    stamp('stats')

    aXU = A.get(64)
    aRing = A.get(32)
    vXres = V.get(8)
    vXF = V.get(8)
    vMu = V.get(2)
    acc = V.get(16)
    vCs = V.get(16)
    D = 6

    def gemm16(xfrag, bar_before, extra, ones, init_zero, a_wait=None):
        toks = {}

        def rd(n):
            if n in bar_before:
                bar_before[n]()
            k, sg = divmod(n, 4)
            r = aRing[4 * (n % 8):4 * (n % 8) + 4]
            P(f"ds_read_b64_tr_b16 {r[0:2]}, {vB[sg]} offset:{k * 4096}")
            toks[n] = P(f"ds_read_b64_tr_b16 {r[2:4]}, {vB[sg]} offset:{k * 4096 + 512}")
        for n in range(D):
            rd(n)
        for n in range(64):
            k, sg = divmod(n, 4)
            if n + D < 64:
                rd(n + D)
            w = [toks[n]]
            if a_wait and sg == 0:
                w.append(a_wait(k))
            P.wait(*w)
            r = aRing[4 * (n % 8):4 * (n % 8) + 4]
            c = '0' if (init_zero and k == 0) else acc[4 * sg:4 * sg + 4]
            if ones and sg == 0:
                P(f"v_mfma_f32_16x16x32_bf16 {vCs[0:4]}, {r}, {vOnes}, {'0' if k == 0 else vCs[0:4]}")
            P(f"v_mfma_f32_16x16x32_bf16 {acc[4 * sg:4 * sg + 4]}, {r}, {xfrag(k)}, {c}")
            P.emit(extra.get(n, []))

    def w1bar(ch):
        def f():
            if ch == 0:
                P.wait(tok[('w1', 0)], P.lg_tok())
                P("s_barrier")
                stamp('w1_0')
                for k in range(16):
                    if k % 4:
                        P(f"v_xor_b32 {vt[k % 2]}, {64 * (k % 4)}, {vU0}")
                    P(f"ds_read_b128 {aXU[4 * k:4 * k + 4]}, {vt[k % 2] if k % 4 else vU0} offset:{256 * (k // 4)}")
                for sg in range(4):
                    x = (4 * (sg >> 1) + (sg & 1)) * 16
                    if x:
                        P(f"v_xor_b32 {vt[sg % 2]}, {x}, {vXr}")
                    P(f"ds_read_b64 {vXres[2 * sg:2 * sg + 2]}, {vt[sg % 2] if x else vXr}")
                P(f"""ds_read_b128 {vXF[0:4]}, {vXf}
                v_xor_b32 {vt[0]}, 16, {vXf}
                ds_read_b128 {vXF[4:8]}, {vt[0]}
                ds_read_b32 {vMu[0]}, {vSt}""")
                tok['xu'] = P(f"ds_read_b32 {vMu[1]}, {vSt} offset:{SR - SM}")
            else:
                w = [tok[('w1', ch)]]
                if ch == 1:
                    w.append(tok['xu'])
                P.wait(*w)
                P("s_barrier")
                if ch == 3:
                    stamp('w1_3')
        return f
    w2l = wtile_dma(sW2, R0, 'w2')
    extra = {}
    for n, it in enumerate(w2l):
        extra.setdefault(16 - D + 2 * n, []).append(it)
    gemm16(lambda k: vX[4 * k:4 * k + 4], {0: w1bar(0), 16: w1bar(1), 32: w1bar(2), 48: w1bar(3)}, extra, True, True)
    V.put(vU0, vXr, vXf, vSt, vA0, vX)
    stamp('gemm1')
    P(f"""
    s_lshl_b32 {t0}, {sW}, 6
    s_add_u32 {t0}, {t0}, {CS1}
    v_lshl_add_u32 {vt[0]}, {vHi2}, 4, {t0}
    v_xor_b32 {vt[1]}, 64, {vt[0]}
    v_xor_b32 {vt[2]}, 128, {vt[0]}
    v_xor_b32 {vt[3]}, 192, {vt[0]}
    s_mov_b32 exec_lo, 0x00010001
    s_mov_b32 exec_hi, 0x00010001
    ds_write_b128 {vt[0]}, {vCs[0:4]}
    s_mov_b64 exec, -1""")
    P.wait(tok['wd'], P.lg_tok())
    P("s_barrier")
    ct = [None] + [P(f"ds_read_b128 {vCs[4 * sg:4 * sg + 4]}, {vt[sg]}") for sg in range(1, 4)]
    aWd = A.get(64)
    P(f"""
    v_xor_b32 {vt[4]}, {vHi2}, {vLo4}
    v_lshlrev_b32 {vt[4]}, 4, {vt[4]}
    v_lshl_add_u32 {vt[4]}, {vLo4}, 8, {vt[4]}
    v_add_u32 {vt[4]}, {R2}, {vt[4]}
    v_xor_b32 {vt[5]}, 64, {vt[4]}
    v_xor_b32 {vt[6]}, 128, {vt[4]}
    v_xor_b32 {vt[7]}, 192, {vt[4]}""")
    wdr = [f"ds_read_b128 {aWd[16 * t + 4 * k:16 * t + 4 * k + 4]}, {vt[4 + k]} offset:{4096 * t}" for k in range(4) for t in range(4)]

    vTmp = V.get(8)
    vO = V.get(8)

    def gelu_pk(a, cs, o, tmp, s0, s1):
        return [f"v_pk_fma_f32 {a}, {cs}, {s0}, {a} op_sel_hi:[1,0,1]",
                f"v_pk_mul_f32 {tmp}, {a}, {a}",
                f"v_pk_fma_f32 {tmp}, {tmp}, {s0}, {s1} op_sel:[0,1,0] op_sel_hi:[1,1,0]",
                f"v_pk_mul_f32 {tmp}, {tmp}, {a}",
                f"v_exp_f32 {tmp[0]}, {tmp[0]}", f"v_exp_f32 {tmp[1]}, {tmp[1]}",
                f"v_pk_fma_f32 {tmp}, {tmp}, {s1}, {s1} op_sel:[0,1,1] op_sel_hi:[1,1,1]",
                f"v_rcp_f32 {tmp[0]}, {tmp[0]}", f"v_rcp_f32 {tmp[1]}, {tmp[1]}",
                f"v_pk_mul_f32 {tmp}, {tmp}, {a}",
                f"v_cvt_pk_bf16_f32 {o}, {tmp[0]}, {tmp[1]}"]

    def zip2(a, b):
        out = []
        for x, y in zip(a, b):
            out += [x, y]
        return out
    for sg in range(4):
        if sg:
            P.wait(ct[sg])
        seq = zip2(gelu_pk(acc[4 * sg:4 * sg + 2], vCs[4 * sg:4 * sg + 2], vO[2 * sg], vTmp[0:2], vS0, vS1),
                   gelu_pk(acc[4 * sg + 2:4 * sg + 4], vCs[4 * sg + 2:4 * sg + 4], vO[2 * sg + 1], vTmp[2:4], vS0, vS1))
        P.emit(interleave(seq, wdr[4 * sg + 4:4 * sg + 8] if sg < 3 else [], lead=0) if sg else interleave(seq, wdr[0:8], lead=8))
    tok['wdr'] = P.lg_tok()
    V.put(vCs)
    vSTo = V.get()
    sSo = S.get(2, 2)
    P(f"""
    s_and_b32 {t0}, {sW}, 1
    v_xor_b32 {vt[0]}, {t0}, {vHi2}
    v_lshlrev_b32 {vt[0]}, 10, {vt[0]}
    s_lshl_b32 {t0}, {sW}, 8
    v_lshl_add_u32 {vt[1]}, {vLo4}, 4, {t0}
    v_add_u32 {vSTo}, {vt[0]}, {vt[1]}
    s_lshl_b32 {t0}, {sG}, 16
    s_lshl_b32 {t1}, {sJ}, 13
    s_add_u32 {t0}, {t0}, {t1}
    s_lshr_b32 {t1}, {sW}, 1
    s_lshl_b32 {t1}, {t1}, 12
    s_add_u32 {sSo[0]}, {t0}, {t1}
    s_xor_b32 {sSo[1]}, {sSo[0]}, 4096""")

    def swap_store(base):
        for v in range(2):
            for d in range(2):
                P(f"v_permlane16_swap_b32 {vO[4 * v + d]}, {vO[4 * v + 2 + d]}")
        P(f"s_add_u32 {t0}, {sSo[0]}, {base}\ns_add_u32 {t1}, {sSo[1]}, {base}")
        P(f"buffer_store_dwordx4 {vO[0:4]}, {vSTo}, {sWS}, {t0} offen {ST}")
        return P(f"buffer_store_dwordx4 {vO[4:8]}, {vSTo}, {sWS}, {t1} offen {ST}")
    lz = P.label('L_nozero')
    P(f"s_mov_b64 exec, {sInv}\ns_cbranch_execz {lz}")
    for d in range(8):
        P(f"v_mov_b32 {vO[d]}, 0")
    P(f"{lz}:\ns_mov_b64 exec, -1")
    tok['hst'] = swap_store(HS)
    stamp('h_stored')

    vW3q = V.get(4)
    sW3o = S.get()
    P(f"""
    s_movk_i32 {t0}, 2752
    v_mul_u32_u24 {vt[0]}, {t0}, {vPat}
    v_and_b32 {vt[1]}, 1, {vHi2}
    v_lshlrev_b32 {vt[1]}, 6, {vt[1]}
    v_and_b32 {vt[2]}, 3, {v0}
    v_lshl_add_u32 {vt[1]}, {vt[2]}, 4, {vt[1]}
    v_add_u32 {vW3q[0]}, {vt[0]}, {vt[1]}
    v_add_u32 {vW3q[1]}, {8 * 2752 - 1024}, {vW3q[0]}
    v_add_u32 {vW3q[2]}, {2 * (8 * 2752 - 1024)}, {vW3q[0]}
    v_add_u32 {vW3q[3]}, {3 * (8 * 2752 - 1024)}, {vW3q[0]}
    s_mul_i32 {sW3o}, {sW}, {128 * 2752}
    s_lshl_b32 {t0}, {sC}, 7
    s_add_u32 {sW3o}, {sW3o}, {t0}
    s_lshl_b32 {t0}, {sW}, 14
    s_add_u32 m0, {t0}, {R1}""")
    w3a = []
    for i in range(4):
        for q in range(4):
            pre = f"s_add_u32 m0, m0, 4096\ns_add_u32 {sW3o}, {sW3o}, {32 * 2752}\n" if (i and q == 0) else ''
            w3a.append(pre + f"buffer_load_dwordx4 {vW3q[q]}, {sW3}, {sW3o} offen offset:{q * 1024} lds")
    dE = V.get(16)
    dO = V.get(32)
    dC = V.get(8)
    mf = []
    for q in range(4):
        for k in range(4):
            xa = aXU[16 * q + 4 * k:16 * q + 4 * k + 4]
            for t in range(4):
                if t < 2:
                    d = dE[8 * t + 4 * (q & 1):8 * t + 4 * (q & 1) + 4]
                    first = q < 2 and k == 0
                else:
                    d = dO[16 * (t - 2) + 4 * q:16 * (t - 2) + 4 * q + 4]
                    first = k == 0
                mf.append(f"v_mfma_f32_16x16x32_bf16 {d}, {xa}, {aWd[16 * t + 4 * k:16 * t + 4 * k + 4]}, {'0' if first else d}")
            if q == 0:
                for t in range(2):
                    d = dC[4 * t:4 * t + 4]
                    mf.append(f"v_mfma_f32_16x16x32_bf16 {d}, {vOnes}, {aWd[16 * t + 4 * k:16 * t + 4 * k + 4]}, {'0' if k == 0 else d}")
    ini = [f"v_mul_f32 {vMu[0]}, {vMu[0]}, {vMu[1]}"]
    for d in range(8):
        ini += [f"v_lshlrev_b32 {acc[2 * d]}, 16, {vXres[d]}", f"v_and_b32 {acc[2 * d + 1]}, 0xffff0000, {vXres[d]}",
                f"v_fma_f32 {acc[2 * d]}, {acc[2 * d]}, {vMu[1]}, -{vMu[0]}", f"v_fma_f32 {acc[2 * d + 1]}, {acc[2 * d + 1]}, {vMu[1]}, -{vMu[0]}"]
    P.wait(tok['wdr'])
    HP = opt.get('hflag_at', 56)
    P.emit(interleave(mf[:HP], zip2(w3a, ini[:16]) + ini[16:], lead=0))
    vFl = V.get(2)

    def wg_flag(off_expr):
        l = P.label('L_flag')
        P(f"s_cmp_lg_u32 {sW}, 0\ns_cbranch_scc1 {l}")
        P(off_expr)
        P(f"v_mov_b32 {vFl[0]}, 0\nv_mov_b32 {vFl[1]}, {sNN[0]}\ns_mov_b64 exec, 1")
        P(f"buffer_store_dword {vFl[1]}, {vFl[0]}, {sWS}, {t0} offen {ST}", optional=True)
        P(f"s_mov_b64 exec, -1\n{l}:")

    def wave_flag(off_expr):
        P(off_expr)
        P(f"v_mov_b32 {vFl[0]}, 0\nv_mov_b32 {vFl[1]}, {sNN[0]}\ns_mov_b64 exec, 1")
        P(f"buffer_store_dword {vFl[1]}, {vFl[0]}, {sWS}, {t0} offen sc1")
        P("s_mov_b64 exec, -1")

    def poll_issue(off, n):
        P(f"s_load_dwordx{n} {sFl[0:n]}, {sWS[0:2]}, {off} glc")

    def poll_check(off, n, issued=False):
        l, l2, l3 = P.label('L_poll'), P.label('L_pdone'), P.label('L_pchk')
        P(f"s_mov_b32 {sNZ}, {SPIN}")
        if issued:
            P(f"s_branch {l3}")
        P(f"{l}:")
        poll_issue(off, n)
        if issued:
            P(f"{l3}:")
        P("s_waitcnt lgkmcnt(0)")
        for i in range(0, n, 2):
            P(f"s_xor_b64 {sFl[i:i + 2]}, {sFl[i:i + 2]}, {sNN}")
        m = n
        while m > 2:
            m //= 2
            for i in range(0, m, 2):
                P(f"s_or_b64 {sFl[i:i + 2]}, {sFl[i:i + 2]}, {sFl[i + m:i + m + 2]}")
        P(f"""s_cbranch_scc0 {l2}
        s_sub_u32 {sNZ}, {sNZ}, 1
        s_cbranch_scc0 {l}
        {l2}:""")

    def wg_poll(off_expr, n):
        l = P.label('L_wgp')
        if opt.get('allpoll'):
            P(off_expr)
            poll_check(t2, n)
            return
        P(f"s_cmp_lg_u32 {sW}, 0\ns_cbranch_scc1 {l}")
        P(off_expr)
        poll_check(t2, n)
        P(f"{l}:")

    P.wait(tok['hst'])
    P("s_barrier")
    wg_flag(f"s_lshl_b32 {t0}, {sG}, 7\ns_lshl_b32 {t1}, {sJ}, 2\ns_add_u32 {t0}, {t0}, {t1}\ns_add_u32 {t0}, {t0}, {FH}")
    stamp('h_flag')
    P.emit(mf[HP:])
    vRm, vRr = V.get(4), V.get(4)
    vSg = V.get(2)
    P(f"""
    s_lshl_b32 {t0}, {sW}, 6
    s_add_u32 {t0}, {t0}, {SM + 16}
    v_lshl_add_u32 {vt[0]}, {vHi2}, 4, {t0}
    ds_read_b128 {vRm}, {vt[0]}""")
    tok['rr'] = P(f"ds_read_b128 {vRr}, {vt[0]} offset:{SR - SM}")
    P(f"""
    v_and_b32 {vt[1]}, 1, {v0}
    v_lshlrev_b32 {vt[1]}, 31, {vt[1]}
    v_xor_b32 {vSg[0]}, {hx(-1.0)}, {vt[1]}
    v_add_f32 {vSg[1]}, 1.0, {vSg[0]}
    v_mul_f32 {vSg[1]}, -2.0, {vSg[1]}""")
    stamp('dft_mfma')
    wg_poll(f"s_lshl_b32 {t2}, {sG}, 7\ns_add_u32 {t2}, {t2}, {FH}", 8)
    if not opt.get('allpoll'):
        P("s_barrier")
    stamp('h_seen')

    aH = aXU
    vLDo = V.get()
    sLo = S.get()
    P(f"""
    s_lshl_b32 {t0}, {sW}, 8
    v_lshl_add_u32 {vt[0]}, {vLo4}, 4, {t0}
    v_lshl_add_u32 {vLDo}, {vHi2}, 10, {vt[0]}
    s_lshl_b32 {sLo}, {sG}, 16
    s_add_u32 {sLo}, {sLo}, {HS}""")
    ht = {}

    def hload(k):
        def f(p):
            ht[k] = p(f"buffer_load_dwordx4 {aH[4 * k:4 * k + 4]}, {vLDo}, {sWS}, {sLo} offen sc1")
            if k < 15:
                p(f"s_add_u32 {sLo}, {sLo}, 4096")
        return f
    for k in range(10):
        hload(k)(P)
    for sg in range(4):
        P(f"v_subrev_u32 {vB[sg]}, {R1}, {vB[sg]}")
    ep = []
    kc, km = vt[0], vt[1]
    ep += [f"v_mul_f32 {kc}, {vSg[1]}, {dC[0]}", f"v_mul_f32 {km}, {vSg[1]}, {dC[4]}"]
    vK = vTmp[4:6]
    ep += [f"v_mov_b32 {vK[0]}, {kc}", f"v_mov_b32 {vK[1]}, {km}"]
    for h in range(2):
        sl = slice(2 * h, 2 * h + 2)
        for t in range(2):
            e0, e1 = dE[8 * t:8 * t + 4][sl], dE[8 * t + 4:8 * t + 8][sl]
            ep += [f"v_pk_fma_f32 {e0}, {e1}, {vSg}, {e0} op_sel_hi:[1,0,1]",
                   f"v_pk_fma_f32 {e0}, {vRm[sl]}, {vK}, {e0} op_sel:[0,{t},0] op_sel_hi:[1,{t},1]",
                   f"v_pk_mul_f32 {e0}, {e0}, {vRr[sl]}",
                   f"v_cvt_pk_bf16_f32 {vO[2 * t + h]}, {e0[0]}, {e0[1]}"]
        C = [dO[4 * q:4 * q + 4][sl] for q in range(4)]
        M = [dO[16 + 4 * q:16 + 4 * q + 4][sl] for q in range(4)]
        neg = "neg_lo:[0,1] neg_hi:[0,1]"
        ep += [f"v_pk_add_f32 {C[0]}, {C[0]}, {C[2]} {neg}", f"v_pk_add_f32 {M[1]}, {M[1]}, {M[3]} {neg}",
               f"v_pk_add_f32 {M[0]}, {M[0]}, {M[2]} {neg}", f"v_pk_add_f32 {C[1]}, {C[1]}, {C[3]} {neg}",
               f"v_pk_fma_f32 {C[0]}, {M[1]}, {vSg}, {C[0]} op_sel_hi:[1,0,1] neg_lo:[0,1,0] neg_hi:[0,1,0]",
               f"v_pk_fma_f32 {M[0]}, {C[1]}, {vSg}, {M[0]} op_sel_hi:[1,0,1]",
               f"v_pk_mul_f32 {C[0]}, {C[0]}, {vRr[sl]}", f"v_pk_mul_f32 {M[0]}, {M[0]}, {vRr[sl]}",
               f"v_cvt_pk_bf16_f32 {vO[4 + h]}, {C[0][0]}, {C[0][1]}", f"v_cvt_pk_bf16_f32 {vO[6 + h]}, {M[0][0]}, {M[0][1]}"]
    P.wait(tok['rr'])
    P.emit(interleave(ep, [hload(k) for k in range(10, 16)], lead=2))
    P(f"""
    s_movk_i32 {t0}, 144
    v_mul_u32_u24 {vt[2]}, {t0}, {vLo4}
    v_lshl_add_u32 {vt[2]}, {vHi2}, 3, {vt[2]}
    s_lshl_b32 {t1}, {sW}, 5
    s_add_u32 {t1}, {t1}, {TIMG}
    v_add_u32 {vt[2]}, {t1}, {vt[2]}""")
    for t in range(4):
        P(f"ds_write_b64 {vt[2]}, {vO[2 * t:2 * t + 2]} offset:{t * 16 * 144}")
    P(f"""
    v_lshrrev_b32 {vt[3]}, 3, {v0}
    v_lshrrev_b32 {vt[4]}, 1, {vt[3]}
    s_lshl_b32 {t1}, {sW}, 2
    v_add_u32 {vt[4]}, {t1}, {vt[4]}
    v_and_b32 {vt[5]}, 1, {vt[3]}
    v_xor_b32 {vt[5]}, 1, {vt[5]}
    v_lshl_add_u32 {vt[4]}, {vt[5]}, 5, {vt[4]}
    v_mul_u32_u24 {vt[4]}, {t0}, {vt[4]}
    v_and_b32 {vt[5]}, 7, {v0}
    v_lshl_add_u32 {vt[4]}, {vt[5]}, 4, {vt[4]}
    v_add_u32 {vt[4]}, {TIMG}, {vt[4]}
    v_lshlrev_b32 {vt[3]}, 13, {vt[3]}
    v_lshl_add_u32 {vt[3]}, {vt[5]}, 4, {vt[3]}
    s_lshl_b32 {t0}, {sJ}, 2
    s_add_u32 {t0}, {t0}, {sW}
    s_lshl_b32 {t0}, {t0}, 16
    s_lshl_b32 {t1}, {sG}, 7
    s_add_u32 {t0}, {t0}, {t1}
    s_add_u32 {t0}, {t0}, {AT}
    s_add_u32 {t1}, {t0}, 4096
    s_waitcnt lgkmcnt(0)
    s_barrier""")
    a0 = P(f"ds_read_b128 {vO[0:4]}, {vt[4]}")
    a1 = P(f"ds_read_b128 {vO[4:8]}, {vt[4]} offset:{16 * 144}")
    V.put(dE, dO, dC, vRm, vRr, vSg, vXres, vMu)
    A.put(aWd)

    def atst(p):
        p.wait(a0)
        p(f"buffer_store_dwordx4 {vO[0:4]}, {vt[3]}, {sWS}, {t0} offen sc1")
        p.wait(a1)
        p(f"buffer_store_dwordx4 {vO[4:8]}, {vt[3]}, {sWS}, {t1} offen sc1")
    stamp('dft_done')
    gemm16(lambda k: aH[4 * k:4 * k + 4], {}, {0: [atst]}, False, False, a_wait=lambda k: ht[k])
    stamp('gemm2')
    for d in range(8):
        P(f"v_cvt_pk_bf16_f32 {vO[d]}, {acc[2 * d]}, {acc[2 * d + 1]}")
    swap_store(X1)
    su, sq = vTmp[0:2], vTmp[2:4]
    P(f"v_pk_add_f32 {su}, {acc[0:2]}, {acc[2:4]}\nv_pk_mul_f32 {sq}, {acc[0:2]}, {acc[0:2]}\nv_pk_fma_f32 {sq}, {acc[2:4]}, {acc[2:4]}, {sq}")
    for d in range(2, 8):
        P(f"v_pk_add_f32 {su}, {su}, {acc[2 * d:2 * d + 2]}\nv_pk_fma_f32 {sq}, {acc[2 * d:2 * d + 2]}, {acc[2 * d:2 * d + 2]}, {sq}")
    P(f"v_add_f32 {su[0]}, {su[0]}, {su[1]}\nv_add_f32 {su[1]}, {sq[0]}, {sq[1]}")
    for op in ('v_permlane32_swap_b32', 'v_permlane16_swap_b32'):
        P(f"""v_mov_b32 {sq[0]}, {su[0]}
        v_mov_b32 {sq[1]}, {su[1]}
        {op} {su[0]}, {sq[0]}
        {op} {su[1]}, {sq[1]}
        v_pk_add_f32 {su}, {su}, {sq}""")
    P(f"""
    s_lshl_b32 {t0}, {sG}, 3
    s_add_u32 {t0}, {t0}, {sJ}
    s_lshl_b32 {t0}, {t0}, 9
    s_lshl_b32 {t1}, {sW}, 7
    s_add_u32 {t0}, {t0}, {t1}
    s_add_u32 {t0}, {t0}, {STATS}
    v_lshlrev_b32 {vt[0]}, 3, {v0}
    s_mov_b64 exec, 0xffff""")
    tok['x1st'] = P(f"buffer_store_dwordx2 {su}, {vt[0]}, {sWS}, {t0} offen {ST}")
    P("s_mov_b64 exec, -1")
    stamp('x1_stored')
    V.put(vLDo, vSTo, vWq, acc)
    S.put(sSo)
    A.put(aXU, aRing)
    vN = V.get()
    vN2 = V.get()
    vC1 = V.get()
    vSel = V.get(4)
    vCw = V.get()
    P(f"""
    v_and_b32 {vt[0]}, 1, {v0}
    v_lshlrev_b32 {vt[0]}, 5, {vt[0]}
    v_bfe_u32 {vt[1]}, {v0}, 1, 1
    v_lshl_add_u32 {vt[0]}, {vt[1]}, 3, {vt[0]}
    v_and_b32 {vt[1]}, 1, {vHi2}
    v_lshl_add_u32 {vt[0]}, {vt[1]}, 4, {vt[0]}
    v_add_u32 {vt[0]}, {vt[0]}, {vR64}
    v_lshrrev_b32 {vt[2]}, 5, {v0}
    v_lshl_add_u32 {vN}, {vt[2]}, 10, {vt[0]}
    v_lshl_add_u32 {vN2}, {vt[2]}, 9, {vt[0]}
    v_add_u32 {vC1}, {R1}, {vN}
    v_cmp_eq_u32 vcc, {vt[1]}, {vLo4}
    v_mov_b32 {vt[3]}, {sOnes}
    v_cndmask_b32 {vSel[0]}, 0, {vt[3]}, vcc
    v_mov_b32 {vSel[1]}, {vSel[0]}
    v_mov_b32 {vSel[2]}, {vSel[0]}
    v_mov_b32 {vSel[3]}, {vSel[0]}
    v_bfe_u32 {vt[0]}, {v0}, 2, 1
    v_lshlrev_b32 {vt[0]}, 6, {vt[0]}
    v_bfe_u32 {vt[1]}, {v0}, 3, 1
    v_lshl_add_u32 {vt[0]}, {vt[1]}, 4, {vt[0]}
    v_and_b32 {vt[1]}, 3, {v0}
    v_lshl_add_u32 {vCw}, {vt[1]}, 2, {vt[0]}
    v_add_u32 {vCw}, {CS3}, {vCw}
    s_movk_i32 {t0}, 2752
    v_lshl_add_u32 {vt[0]}, {vHi2}, 2, {vt[1]}""".replace(f"v_lshl_add_u32 {vt[0]}, {vHi2}, 2, {vt[1]}", f"v_lshrrev_b32 {vt[0]}, 2, {v0}"))
    P(f"""
    v_mul_u32_u24 {vt[0]}, {t0}, {vt[0]}
    v_lshl_add_u32 {vW3q[0]}, {vt[1]}, 4, {vt[0]}
    v_add_u32 {vW3q[1]}, {16 * 2752 - 1024}, {vW3q[0]}
    v_add_u32 {vW3q[2]}, {2 * (16 * 2752 - 1024)}, {vW3q[0]}
    v_add_u32 {vW3q[3]}, {3 * (16 * 2752 - 1024)}, {vW3q[0]}
    s_mul_i32 {sW3o}, {sW}, {128 * 2752}
    s_min_u32 {t0}, {sC}, 10
    s_lshl_b32 {t0}, {t0}, 6
    s_add_u32 {sW3o}, {sW3o}, {t0}
    s_add_u32 {sW3o}, {sW3o}, 2048""")
    P.wait(tok['x1st'])
    wave_flag(f"""s_lshl_b32 {t0}, {sJ}, 2
    s_add_u32 {t0}, {t0}, {sW}
    s_lshl_b32 {t0}, {t0}, 5
    s_add_u32 {t0}, {t0}, {sG}
    s_lshl_b32 {t0}, {t0}, 2
    s_add_u32 {t0}, {t0}, {FA}""")
    P("s_barrier")
    wg_flag(f"s_lshl_b32 {t0}, {sG2}, 7\ns_lshl_b32 {t1}, {sC}, 2\ns_add_u32 {t0}, {t0}, {t1}\ns_add_u32 {t0}, {t0}, {FX}")
    stamp('x1_flag')
    P(f"s_lshl_b32 {t0}, {sW}, 13\ns_add_u32 m0, {t0}, {R0}\ns_nop 0")
    for i in range(2):
        if i:
            P(f"s_add_u32 m0, m0, 4096\ns_add_u32 {sW3o}, {sW3o}, {64 * 2752}")
        for q in range(4):
            tok['w3b'] = P(f"buffer_load_dwordx4 {vW3q[q]}, {sW3}, {sW3o} offen offset:{q * 1024} lds")
    V.put(vW3q)

    vRing = V.get(32)
    vCa = V.get(4)

    def colsum(addr, kstride, hstride, cw_off, extra):
        toks = {}

        def rd(k):
            r = vRing[4 * (k % 8):4 * (k % 8) + 4]
            P(f"ds_read_b64_tr_b16 {r[0:2]}, {addr} offset:{k * kstride}")
            toks[k] = P(f"ds_read_b64_tr_b16 {r[2:4]}, {addr} offset:{k * kstride + hstride}")
        for k in range(6):
            rd(k)
        for k in range(32):
            if k + 6 < 32:
                rd(k + 6)
            P.wait(toks[k])
            P(f"v_mfma_f32_16x16x32_bf16 {vCa}, {vSel}, {vRing[4 * (k % 8):4 * (k % 8) + 4]}, {'0' if k == 0 else vCa}")
            P.emit(extra.get(k, []))
        P(f"""s_mov_b64 exec, 0xffff
        ds_write_b32 {cw_off}, {vCa[0]}
        ds_write_b32 {cw_off}, {vCa[1]} offset:32
        s_mov_b64 exec, -1""")
    P(f"""
    s_and_b32 {t0}, {sW}, 1
    s_lshl_b32 {t1}, {t0}, 8
    v_add_u32 {vt[0]}, {t1}, {vC1}
    s_lshl_b32 {t1}, {t0}, 7
    v_add_u32 {vt[1]}, {t1}, {vCw}""")
    colsum(vt[0], 2048, 512, vt[1], {})
    stamp('cs01')
    wg_poll(f"s_lshl_b32 {t2}, {sG2}, 7\ns_add_u32 {t2}, {t2}, {FX}", 16)
    P.wait(tok['w3b'])
    P("s_barrier")
    stamp('x1_seen')

    aA = A.get(128)
    vAo, vSo4, vSo4t = V.get(), V.get(), V.get()
    vPs = V.get(8)
    sAo, sH2o, sH2t = S.get(), S.get(), S.get()
    P(f"""
    s_and_b32 {t0}, {sW}, 1
    s_lshl_b32 {t0}, {t0}, 5
    v_and_b32 {vt[0]}, 31, {v0}
    v_add_u32 {vt[0]}, {t0}, {vt[0]}
    v_lshrrev_b32 {vt[1]}, 5, {v0}
    v_lshlrev_b32 {vt[2]}, 4, {vt[0]}
    v_lshl_add_u32 {vAo}, {vt[1]}, 10, {vt[2]}
    v_lshl_add_u32 {vSo4}, {vt[1]}, 11, {vt[2]}
    v_lshlrev_b32 {vt[0]}, 3, {vt[0]}
    v_lshl_add_u32 {vt[0]}, {vt[1]}, 11, {vt[0]}
    s_lshl_b32 {t0}, {sG2}, 1
    s_lshr_b32 {t1}, {sW}, 1
    s_add_u32 {t0}, {t0}, {t1}
    s_lshl_b32 {sAo}, {t0}, 16
    s_add_u32 {sAo}, {sAo}, {X1}
    s_mul_i32 {sH2o}, {t0}, {H2G}
    s_lshl_b32 {t0}, {t0}, 12
    s_add_u32 {t0}, {t0}, {STATS}""")
    for i in range(4):
        tok['ps'] = P(f"buffer_load_dwordx2 {vPs[2 * i:2 * i + 2]}, {vt[0]}, {sWS}, {t0} offen offset:{512 * i} sc1")
    at = {}

    def aload(k):
        def f(p):
            at[k] = p(f"buffer_load_dwordx4 {aA[4 * k:4 * k + 4]}, {vAo}, {sWS}, {sAo} offen offset:{2048 * (k % 2)} sc1")
            if k % 2:
                p(f"s_add_u32 {sAo}, {sAo}, 4096")
        return f
    LA0 = 10
    for k in range(LA0):
        aload(k)(P)
    P(f"""
    s_add_u32 {sH2o}, {sH2o}, {H2}
    s_cmp_lt_u32 {sC}, 11
    s_cselect_b32 {t1}, 0, {WS_BYTES}
    v_add_u32 {vSo4t}, {t1}, {vSo4}
    s_min_u32 {t0}, {sC}, 10
    s_lshl_b32 {t0}, {t0}, 12
    s_add_u32 {sH2t}, {sH2o}, {t0}
    s_add_u32 {sH2t}, {sH2t}, {128 * 1024}
    s_lshl_b32 {t0}, {sC}, 13
    s_add_u32 {sH2o}, {sH2o}, {t0}
    v_add_u32 {vt[1]}, 256, {vCw}""")
    colsum(vN2, 1024, 256, vt[1], {4 * n + 2: [aload(LA0 + n)] for n in range(8)})
    V.put(vSel, vCa, vCw)
    stamp('cs2')
    P.wait(tok['ps'])
    P(f"""
    v_pk_add_f32 {vPs[0:2]}, {vPs[0:2]}, {vPs[2:4]}
    v_pk_add_f32 {vPs[4:6]}, {vPs[4:6]}, {vPs[6:8]}
    v_pk_add_f32 {vPs[0:2]}, {vPs[0:2]}, {vPs[4:6]}
    v_mov_b32 {vPs[2]}, {vPs[0]}
    v_mov_b32 {vPs[3]}, {vPs[1]}
    v_permlane32_swap_b32 {vPs[0]}, {vPs[2]}
    v_permlane32_swap_b32 {vPs[1]}, {vPs[3]}
    v_pk_add_f32 {vPs[0:2]}, {vPs[0:2]}, {vPs[2:4]}
    v_mul_f32 {vPs[0]}, {hx(1 / 512)}, {vPs[0]}
    v_mul_f32 {vPs[1]}, {hx(1 / 512)}, {vPs[1]}
    v_fma_f32 {vPs[1]}, -{vPs[0]}, {vPs[0]}, {vPs[1]}
    v_max_f32 {vPs[1]}, 0, {vPs[1]}
    v_add_f32 {vPs[1]}, {hx(1e-5)}, {vPs[1]}
    v_rsq_f32 {vPs[2]}, {vPs[1]}
    v_sub_f32 {vS0[0]}, 0, {vPs[0]}
    v_mul_f32 {vS1[1]}, {vPs[1]}, {vPs[2]}
    v_mul_f32 {vS1[0]}, {hx(C0)}, {vPs[2]}
    v_mul_f32 {vPs[3]}, {vPs[2]}, {vPs[2]}
    v_mul_f32 {vPs[3]}, {vPs[3]}, {vPs[2]}
    v_mul_f32 {vS0[1]}, {hx(C1)}, {vPs[3]}""")
    V.put(vPs)
    vW4q = V.get(4)
    sW4b, sW4o = S.get(), S.get()
    sWm, sWk = S.get(), S.get()
    P(f"""
    s_and_b32 {sWm}, {sW}, 1
    s_lshr_b32 {sWk}, {sW}, 1
    v_and_b32 {vt[0]}, 1, {vHi2}
    v_xor_b32 {vt[0]}, {sWk}, {vt[0]}
    v_lshlrev_b32 {vt[0]}, 6, {vt[0]}
    v_and_b32 {vt[1]}, 3, {v0}
    v_lshl_add_u32 {vt[0]}, {vt[1]}, 4, {vt[0]}
    v_lshl_add_u32 {vW4q[0]}, {vPat}, 10, {vt[0]}
    v_add_u32 {vW4q[1]}, 7168, {vW4q[0]}
    v_add_u32 {vW4q[2]}, {2 * 7168}, {vW4q[0]}
    v_add_u32 {vW4q[3]}, {3 * 7168}, {vW4q[0]}
    s_mul_i32 {sW4b}, {sWk}, {86 * 8192}
    s_add_u32 {sW4b}, {sW4b}, {sJ128}""")

    def w4dma(sig0, n, ldsbase, half, key):
        L = []
        for i in range(n):
            pre = ''
            if i == 0:
                pre = f"""s_mul_i32 {t0}, {sWk}, {half}
                s_mul_i32 {t1}, {sWm}, {n * 1024}
                s_add_u32 {t0}, {t0}, {t1}
                s_add_u32 m0, {t0}, {ldsbase}
                s_lshl_b32 {t1}, {t1}, 3
                s_add_u32 {sW4o}, {sW4b}, {t1}
                s_add_u32 {sW4o}, {sW4o}, {2 * sig0 * 8192}
                """
            elif i % 4 == 0:
                pre = f"s_add_u32 m0, m0, 4096\ns_add_u32 {sW4o}, {sW4o}, 32768\n"
            L.append(pre + f"buffer_load_dwordx4 {vW4q[i % 4]}, {sW4}, {sW4o} offen offset:{(i % 4) * 1024} lds")
        L.append(lambda p: tok.__setitem__(key, p.vm_tok()))
        return L
    vX1f = V.get(8)

    def x1f(p):
        p(f"""s_lshl_b32 {t0}, {sG}, 16
        s_lshl_b32 {t1}, {sJ}, 13
        s_add_u32 {t0}, {t0}, {t1}
        s_lshl_b32 {t1}, {sWk}, 12
        s_add_u32 {t0}, {t0}, {t1}
        s_add_u32 {t0}, {t0}, {X1}
        buffer_load_dwordx4 {vX1f[0:4]}, {vSo4}, {sWS}, {t0} offen sc1""")
        tok['x1f'] = p(f"buffer_load_dwordx4 {vX1f[4:8]}, {vSo4}, {sWS}, {t0} offen offset:1024 sc1")
    T = V.get(48, 4)
    later = [aload(k) for k in range(LA0 + 8, 32)] + [x1f] + w4dma(0, 8, R0 + 32768, 16384, 'p0a') + w4dma(8, 5, P0B, 10240, 'p0b')
    toks = {}

    def rd1(k):
        r = vRing[8 * (k % 4):8 * (k % 4) + 8]
        for nh in range(2):
            for hf in range(2):
                toks[k] = P(f"ds_read_b64_tr_b16 {r[4 * nh + 2 * hf:4 * nh + 2 * hf + 2]}, {vC1} offset:{k * 2048 + hf * 512 + nh * 256}")
    sFo = S.get()
    for k in range(3):
        rd1(k)
    for k in range(32):
        if k + 3 < 32:
            rd1(k + 3)
        P.wait(toks[k], at[k])
        r = vRing[8 * (k % 4):8 * (k % 4) + 8]
        for nh in range(2):
            P(f"v_mfma_f32_32x32x16_bf16 {T[16 * nh:16 * nh + 16]}, {r[4 * nh:4 * nh + 4]}, {aA[4 * k:4 * k + 4]}, {'0' if k == 0 else T[16 * nh:16 * nh + 16]}")
        if later:
            P.emit([later.pop(0)])
        if k == 28:
            P(f"""s_lshl_b32 {sFo}, {sJ}, 2
            s_lshr_b32 {t0}, {sG}, 3
            s_add_u32 {sFo}, {sFo}, {t0}
            s_lshl_b32 {sFo}, {sFo}, 7
            s_lshl_b32 {t0}, {sWm}, 6
            s_add_u32 {sFo}, {sFo}, {t0}
            s_add_u32 {sFo}, {sFo}, {FA}""")
            poll_issue(sFo, 16)
    P.emit(later)
    stamp('phase1')
    poll_check(sFo, 16, issued=True)
    P.wait(tok['p0b'])
    P("s_barrier")
    stamp('barA')
    vCv = V.get(16)
    vCr = V.get()
    P(f"""
    v_and_b32 {vt[0]}, 1, {vHi2}
    v_lshlrev_b32 {vt[0]}, 6, {vt[0]}
    v_and_b32 {vt[1]}, 3, {v0}
    v_lshl_add_u32 {vt[0]}, {vt[1]}, 4, {vt[0]}
    v_lshl_add_u32 {vt[0]}, {vPat}, 7, {vt[0]}
    v_xor_b32 {vt[1]}, 16, {vt[0]}
    s_lshl_b32 {t0}, {sW}, 11
    s_add_u32 m0, {t0}, {ZA}
    s_sub_u32 {t1}, {sE}, 1
    s_lshl_b32 {t1}, {t1}, 13
    s_add_u32 {t1}, {t1}, {t0}
    s_add_u32 {t1}, {t1}, {AT}
    buffer_load_dwordx4 {vt[0]}, {sWS}, {t1} offen sc1 lds""")
    tok['z'] = P(f"buffer_load_dwordx4 {vt[1]}, {sWS}, {t1} offen offset:1024 sc1 lds")
    P(f"v_lshrrev_b32 {vCr}, 5, {v0}\nv_lshlrev_b32 {vCr}, 6, {vCr}\nv_add_u32 {vCr}, {CS3}, {vCr}")
    aPre = A.get(48)
    vPa = V.get()
    P(f"s_lshl_b32 {t0}, {sWk}, 14\nv_add_u32 {vPa}, {t0}, {vN}")
    pre = [f"ds_read_b64_tr_b16 {aPre[8 * s + 4 * sl + 2 * hf:8 * s + 4 * sl + 2 * hf + 2]}, {vPa} offset:{32768 + s * 2048 + hf * 512 + sl * 256}"
           for s in range(6) for sl in range(2) for hf in range(2)]

    def gelu_sc(a, cs, o, tmp, s0, s1):
        L = []
        for x in range(2):
            L.append([f"v_fmac_f32 {a[x]}, {cs[x]}, {s0[0]}", f"v_mul_f32 {tmp[x]}, {a[x]}, {a[x]}",
                      f"v_fma_f32 {tmp[x]}, {tmp[x]}, {s0[1]}, {s1[0]}", f"v_mul_f32 {tmp[x]}, {tmp[x]}, {a[x]}",
                      f"v_exp_f32 {tmp[x]}, {tmp[x]}", f"v_fma_f32 {tmp[x]}, {tmp[x]}, {s1[1]}, {s1[1]}",
                      f"v_rcp_f32 {tmp[x]}, {tmp[x]}", f"v_mul_f32 {tmp[x]}, {tmp[x]}, {a[x]}"])
        return zip2(L[0], L[1]) + [f"v_cvt_pk_bf16_f32 {o}, {tmp[0]}, {tmp[1]}"]

    def tile_epi(t, packed, soff, inst0, key, voff=None):
        voff = voff or vSo4
        L = []
        cst = {}

        def rdcs(p):
            for i in range(4):
                cst[i] = p(f"ds_read_b128 {vCv[4 * i:4 * i + 4]}, {vCr} offset:{128 * t + 16 * i}")
        L.append(rdcs)
        a = T[16 * t:16 * t + 16]
        for i in range(4):
            L.append(lambda p, i=i: p.wait(cst[i]))
            if packed:
                L += zip2(gelu_pk(a[4 * i:4 * i + 2], vCv[4 * i:4 * i + 2], vO[2 * i], vTmp[0:2], vS0, vS1),
                          gelu_pk(a[4 * i + 2:4 * i + 4], vCv[4 * i + 2:4 * i + 4], vO[2 * i + 1], vTmp[2:4], vS0, vS1))
            else:
                L += gelu_sc(a[4 * i:4 * i + 2], vCv[4 * i:4 * i + 2], vO[2 * i], vTmp[0:2], vS0, vS1)
                L += gelu_sc(a[4 * i + 2:4 * i + 4], vCv[4 * i + 2:4 * i + 4], vO[2 * i + 1], vTmp[2:4], vS0, vS1)
            if i % 2:
                def st(p, i=i):
                    tok[key] = p(f"buffer_store_dwordx4 {vO[4 * (i // 2):4 * (i // 2) + 4]}, {voff}, {sWS}, {soff} offen offset:{inst0 + 1024 * (i // 2)} {ST}")
                L.append(st)
        return L
    pk2 = opt.get('pk2', 0)
    epi = tile_epi(0, pk2, sH2o, 0, 'h2st') + [f"s_add_u32 {sH2o}, {sH2o}, 4096"] + tile_epi(1, pk2, sH2o, 0, 'h2st')
    side = interleave(pre, w4dma(13, 16, R1, 32768, 'p1'))
    toks = {}

    def rd2(k):
        r = vRing[4 * (k % 8):4 * (k % 8) + 4]
        for hf in range(2):
            toks[k] = P(f"ds_read_b64_tr_b16 {r[2 * hf:2 * hf + 2]}, {vN2} offset:{k * 1024 + hf * 256}")
    for k in range(3):
        rd2(k)
    ne, ns = len(epi), len(side)
    de = dn = 0
    for k in range(32):
        if k + 3 < 32:
            rd2(k + 3)
        P.wait(toks[k])
        P(f"v_mfma_f32_32x32x16_bf16 {T[32:48]}, {vRing[4 * (k % 8):4 * (k % 8) + 4]}, {aA[4 * k:4 * k + 4]}, {'0' if k == 0 else T[32:48]}")
        we, wn = ne * (k + 1) // 32, ns * (k + 1) // 32
        P.emit(side[dn:wn])
        P.emit(epi[de:we])
        de, dn = we, wn
    stamp('phase2')
    P.wait(tok['z'], P.lg_tok())
    P("s_barrier")
    stamp('barB')
    A.put(aA)
    aZ = A.get(32)
    P(f"v_add_u32 {vt[0]}, {ZA}, {vZp}\nv_xor_b32 {vt[1]}, 16, {vt[0]}")
    zr = [f"ds_read_b64_tr_b16 {aZ[16 * pt + 4 * b + 2 * hf:16 * pt + 4 * b + 2 * hf + 2]}, {vt[b & 1]} offset:{pt * 4096 + hf * 512 + (b >> 1) * 256}"
          for b in range(4) for pt in range(2) for hf in range(2)]
    e2 = tile_epi(2, 1, sH2t, 0, 'h2st', vSo4t)
    P.emit(e2[:2] + interleave(e2[2:], zr[:8], lead=4) + zr[8:])
    tok['zr'] = P.lg_tok()
    stamp('h2_stored')
    V.put(vCv, vCr, vN2, vC1, vZp)
    P.emit(w4dma(29, 8, R0, 16384, 'p2') + w4dma(37, 6, R0 + 32768, 16384, 'p3'))

    U = T[0:32]
    P.wait(tok['zr'])
    for b in range(4):
        zr_, zi_ = aZ[4 * b:4 * b + 4], aZ[16 + 4 * b:16 + 4 * b + 4]
        ur, ui = U[8 * b:8 * b + 4], U[8 * b + 4:8 * b + 8]
        P(f"""v_mfma_f32_16x16x32_bf16 {ur}, {zr_}, {aF32[0:4]}, 0
        v_mfma_f32_16x16x32_bf16 {ui}, {zi_}, {aF32[8:12]}, 0
        v_mfma_f32_16x16x32_bf16 {ur}, {zi_}, {aF32[4:8]}, {ur}
        v_mfma_f32_16x16x32_bf16 {ui}, {zr_}, {aF32[12:16]}, {ui}""")
    vV = vRing[0:16]
    for b in range(4):
        for h in range(2):
            ur, ui = U[8 * b + 2 * h:8 * b + 2 * h + 2], U[8 * b + 4 + 2 * h:8 * b + 6 + 2 * h]
            c, s = vTW[4 * b + 2 * h:4 * b + 2 * h + 2], vTW[16 + 4 * b + 2 * h:16 + 4 * b + 2 * h + 2]
            x, y = vTmp[0:2], vTmp[2:4]
            P(f"""v_pk_mul_f32 {x}, {ur}, {c}
            v_pk_mul_f32 {y}, {ui}, {c}
            v_pk_fma_f32 {x}, {ui}, {s}, {x}
            v_pk_fma_f32 {y}, {ur}, {s}, {y} neg_lo:[0,1,0] neg_hi:[0,1,0]
            v_cvt_pk_bf16_f32 {vV[4 * b + h]}, {x[0]}, {x[1]}
            v_cvt_pk_bf16_f32 {vV[4 * b + 2 + h]}, {y[0]}, {y[1]}""")
    P.wait(tok['h2st'])
    P("s_barrier")
    wg_flag(f"s_lshl_b32 {t0}, {sG2}, 7\ns_lshl_b32 {t1}, {sC}, 2\ns_add_u32 {t0}, {t0}, {t1}\ns_add_u32 {t0}, {t0}, {FH2}")
    stamp('h2_flag')
    Y = T[32:48]
    for b in range(4):
        for tau in range(4):
            y = Y[4 * tau:4 * tau + 4]
            P(f"v_mfma_f32_16x16x32_bf16 {y}, {vV[4 * b:4 * b + 4]}, {aF64[16 * b + 4 * tau:16 * b + 4 * tau + 4]}, {'0' if b == 0 else y}")
    sRow, sMask = S.get(), S.get()
    P(f"""
    s_sub_u32 {t0}, 512, {sE}
    s_cmp_eq_u32 {sE}, 256
    s_cselect_b32 {t0}, 0, {t0}
    s_cselect_b32 {t1}, 0, -1
    s_cmp_eq_u32 {sWk}, 0
    s_cselect_b32 {sRow}, {sE}, {t0}
    s_cselect_b32 {sMask}, -1, {t1}
    s_movk_i32 {t0}, 80
    v_mul_u32_u24 {vt[0]}, {t0}, {vLo4}
    v_lshl_add_u32 {vt[0]}, {vHi2}, 3, {vt[0]}
    s_mul_i32 {t1}, {sWk}, 5120
    s_add_u32 {t1}, {t1}, {ZA}
    s_lshl_b32 {t2}, {sWm}, 5
    s_add_u32 {t2}, {t2}, {t1}
    v_add_u32 {vt[0]}, {t2}, {vt[0]}
    v_lshrrev_b32 {vt[1]}, 2, {v0}
    v_mul_u32_u24 {vt[1]}, {t0}, {vt[1]}
    v_and_b32 {vt[2]}, 3, {v0}
    v_lshl_add_u32 {vt[1]}, {vt[2]}, 4, {vt[1]}
    s_mul_i32 {t2}, {sWm}, 2560
    s_add_u32 {t2}, {t2}, {t1}
    v_add_u32 {vt[1]}, {t2}, {vt[1]}""")
    for tau in range(4):
        for h in range(2):
            P(f"v_cvt_pk_bf16_f32 {vO[2 * tau + h]}, {Y[4 * tau + 2 * h]}, {Y[4 * tau + 2 * h + 1]}")
        for h in range(2):
            P(f"v_and_b32 {vO[2 * tau + h]}, {sMask}, {vO[2 * tau + h]}")
        P(f"ds_write_b64 {vt[0]}, {vO[2 * tau:2 * tau + 2]} offset:{1280 * tau}")
    P(f"""
    s_lshl_b32 {t0}, {sRow}, 12
    s_lshl_b32 {t1}, {sWm}, 11
    s_add_u32 {t0}, {t0}, {t1}
    s_add_u32 {t0}, {t0}, {YT}
    s_waitcnt lgkmcnt(0)
    s_barrier""")
    y0 = P(f"ds_read_b128 {vO[0:4]}, {vt[1]}")
    y1 = P(f"ds_read_b128 {vO[4:8]}, {vt[1]} offset:1280")
    P.wait(y0)
    P(f"buffer_store_dwordx4 {vO[0:4]}, {vL16}, {sWS}, {t0} offen sc1")
    P.wait(y1)
    tok['yst'] = P(f"buffer_store_dwordx4 {vO[4:8]}, {vL16}, {sWS}, {t0} offen offset:1024 sc1")
    A.put(aZ, aF32, aF64)
    V.put(vTW)
    stamp('fft_done')
    a0r, a1r = T[0:16], T[16:32]
    P.wait(tok['x1f'])
    for d in range(8):
        P(f"v_lshlrev_b32 {a0r[2 * d]}, 16, {vX1f[d]}\nv_and_b32 {a0r[2 * d + 1]}, 0xffff0000, {vX1f[d]}")
    V.put(vX1f)
    vPb, vPc = V.get(), V.get()
    P(f"""
    s_mul_i32 {t0}, {sWk}, 10240
    s_add_u32 {t0}, {t0}, {P0B}
    v_add_u32 {vPb}, {t0}, {vN}
    s_lshl_b32 {t0}, {sWk}, 15
    s_add_u32 {t0}, {t0}, {R1}
    v_add_u32 {vPc}, {t0}, {vN}
    s_mul_i32 {sAo}, {sG}, {H2G}
    s_mul_i32 {t0}, {sWk}, {43 * 2048}
    s_add_u32 {sAo}, {sAo}, {t0}
    s_add_u32 {sAo}, {sAo}, {H2}""")
    wg_poll(f"s_lshl_b32 {t2}, {sG2}, 7\ns_add_u32 {t2}, {t2}, {FH2}", 16)
    P.wait(tok['p3'])
    P("s_barrier")
    stamp('h2_seen')

    aB = A.get(172)
    bt = {}

    def bload(s):
        bt[s] = P(f"buffer_load_dwordx4 {aB[4 * s:4 * s + 4]}, {vAo}, {sWS}, {sAo} offen offset:{2048 * (s % 2)} sc1")
        if s % 2:
            P(f"s_add_u32 {sAo}, {sAo}, 4096")
    LB = opt.get('lb', 12)
    for s in range(LB):
        bload(s)
    toks = {}

    def w4addr(s):
        if s < 8:
            return vPa, 32768 + s * 2048
        if s < 13:
            return vPb, (s - 8) * 2048
        if s < 29:
            return vPc, (s - 13) * 2048
        if s < 37:
            return vPa, (s - 29) * 2048
        return vPa, 32768 + (s - 37) * 2048

    def rd4(s):
        r = vRing[8 * (s % 4):8 * (s % 4) + 8]
        ad, off = w4addr(s)
        for sl in range(2):
            for hf in range(2):
                toks[s] = P(f"ds_read_b64_tr_b16 {r[4 * sl + 2 * hf:4 * sl + 2 * hf + 2]}, {ad} offset:{off + hf * 512 + sl * 256}")
    vXf32 = V.get(16)
    unp = []
    for d in range(8):
        unp += [f"v_lshlrev_b32 {vXf32[2 * d]}, 16, {vXF[d]}", f"v_and_b32 {vXf32[2 * d + 1]}, 0xffff0000, {vXF[d]}"]
    P.emit(unp)
    V.put(vXF)
    YS = opt.get('ys', 20)
    for s in range(43):
        if s + LB < 43:
            bload(s + LB)
        if 6 <= s + 3 < 43:
            rd4(s + 3)
        P.wait(bt[s], toks.get(s))
        r = aPre[8 * s:8 * s + 8] if s < 6 else vRing[8 * (s % 4):8 * (s % 4) + 8]
        P(f"v_mfma_f32_32x32x16_bf16 {a0r}, {r[0:4]}, {aB[4 * s:4 * s + 4]}, {a0r}")
        P(f"v_mfma_f32_32x32x16_bf16 {a1r}, {r[4:8]}, {aB[4 * s:4 * s + 4]}, {'0' if s == 0 else a1r}")
        if s == 0:
            stamp('g4_first')
            wave_flag(f"s_lshl_b32 {t0}, {sWm}, 9\ns_add_u32 {t0}, {t0}, {sRow}\ns_lshl_b32 {t0}, {t0}, 2\ns_add_u32 {t0}, {t0}, {FY}")
        if s == YS - 6:
            P(f"""s_lshr_b32 {sFo}, {sG}, 4
            s_lshl_b32 {sFo}, {sFo}, 11
            s_lshl_b32 {t0}, {sJ}, 8
            s_add_u32 {sFo}, {sFo}, {t0}
            s_lshl_b32 {t0}, {sW}, 6
            s_add_u32 {sFo}, {sFo}, {t0}
            s_add_u32 {sFo}, {sFo}, {FY}""")
            poll_issue(sFo, 16)
        if s == YS:
            poll_check(sFo, 16, issued=True)
            P(f"""s_barrier
            v_and_b32 {vt[0]}, 1, {vHi2}
            v_lshlrev_b32 {vt[0]}, 6, {vt[0]}
            v_and_b32 {vt[1]}, 3, {v0}
            v_lshl_add_u32 {vt[0]}, {vt[1]}, 4, {vt[0]}
            v_lshl_add_u32 {vt[0]}, {vPat}, 12, {vt[0]}
            v_add_u32 {vt[1]}, {32768 - 1024}, {vt[0]}
            s_lshl_b32 {t0}, {sW}, 11
            s_add_u32 m0, {t0}, {ZA}
            s_lshl_b32 {t0}, {sJ}, 18
            s_lshl_b32 {t1}, {sW}, 16
            s_add_u32 {t0}, {t0}, {t1}
            s_lshl_b32 {t1}, {sG}, 7
            s_add_u32 {t0}, {t0}, {t1}
            s_add_u32 {t0}, {t0}, {YT}
            buffer_load_dwordx4 {vt[0]}, {sWS}, {t0} offen sc1 lds""")
            tok['yt'] = P(f"buffer_load_dwordx4 {vt[1]}, {sWS}, {t0} offen offset:1024 sc1 lds")
            stamp('y_seen')
    stamp('gemm4')
    P(f"""
    s_lshl_b32 {t0}, {sW}, 12
    s_add_u32 {t0}, {t0}, {RED}
    v_add_u32 {vt[0]}, {t0}, {vL16}
    v_xor_b32 {vt[1]}, 8192, {vt[0]}
    v_lshrrev_b32 {vt[2]}, 5, {v0}
    v_lshlrev_b32 {vt[3]}, 11, {vt[2]}
    v_add_u32 {vt[3]}, {vt[3]}, {vR64}
    v_and_b32 {vt[4]}, 1, {vHi2}
    v_lshl_add_u32 {vt[3]}, {vt[4]}, 5, {vt[3]}
    v_and_b32 {vt[4]}, 3, {v0}
    v_lshl_add_u32 {vt[3]}, {vt[4]}, 3, {vt[3]}
    s_lshl_b32 {t0}, {sWk}, 12
    s_lshl_b32 {t1}, {sWm}, 8
    s_add_u32 {t0}, {t0}, {t1}
    s_add_u32 {t0}, {t0}, {ZA}
    v_add_u32 {vt[3]}, {t0}, {vt[3]}""")
    for i in range(4):
        P(f"ds_write_b128 {vt[0]}, {a1r[4 * i:4 * i + 4]} offset:{1024 * i}")
    P(f"""
    v_and_b32 {vt[4]}, 31, {v0}
    v_lshlrev_b32 {vt[4]}, 10, {vt[4]}
    v_lshl_add_u32 {vt[4]}, {vt[2]}, 5, {vt[4]}
    s_lshl_b32 {t0}, {sG}, 1
    s_add_u32 {t0}, {t0}, {sWm}
    s_lshl_b32 {t0}, {t0}, 15
    s_lshl_b32 {t1}, {sWk}, 6
    s_add_u32 {t0}, {t0}, {t1}
    s_add_u32 {t0}, {t0}, {sJ128}""")
    P.wait(tok['yt'], P.lg_tok())
    P("s_barrier")
    stamp('barD')
    pr = T[32:48]
    vY = vRing[0:8]
    vSf = vRing[8:24]
    rt = []
    for i in range(4):
        P(f"ds_read_b128 {pr[4 * i:4 * i + 4]}, {vt[1]} offset:{1024 * i}")
        rt.append(P(f"ds_read_b64_tr_b16 {vY[2 * i:2 * i + 2]}, {vt[3]} offset:{(i >> 1) * 1024 + (i & 1) * 512}"))
    vNl = vS0
    P(f"v_mov_b32 {vNl[0]}, {hx(-math.log2(math.e))}")
    for i in range(4):
        P.wait(rt[i])
        seqs = []
        for h in range(2):
            d = 2 * i + h
            a, p_, tmp, sf, xf = a0r[2 * d:2 * d + 2], pr[2 * d:2 * d + 2], vTmp[2 * h:2 * h + 2], vSf[2 * d:2 * d + 2], vXf32[2 * d:2 * d + 2]
            seqs.append([f"v_pk_add_f32 {a}, {a}, {p_}",
                         f"v_lshlrev_b32 {sf[0]}, 16, {vY[d]}",
                         f"v_pk_mul_f32 {tmp}, {a}, {vNl} op_sel_hi:[1,0]",
                         f"v_and_b32 {sf[1]}, 0xffff0000, {vY[d]}",
                         f"v_exp_f32 {tmp[0]}, {tmp[0]}", f"v_exp_f32 {tmp[1]}, {tmp[1]}",
                         f"v_pk_mul_f32 {a}, {a}, {sf}",
                         f"v_pk_add_f32 {tmp}, {tmp}, 1.0 op_sel_hi:[1,0]",
                         f"v_rcp_f32 {tmp[0]}, {tmp[0]}", f"v_rcp_f32 {tmp[1]}, {tmp[1]}",
                         f"v_pk_fma_f32 {a}, {a}, {tmp}, {xf}",
                         f"v_cvt_pk_bf16_f32 {vO[d]}, {a[0]}, {a[1]}"])
        P.emit(zip2(*seqs))
        if i % 2:
            P(f"buffer_store_dwordx4 {vO[4 * (i // 2):4 * (i // 2) + 4]}, {vt[4]}, {sOUT}, {t0} offen offset:{16 * (i // 2)}")
    stamp('out_stored')

    le = P.label('L_noepoch')
    lp, lq = P.label('L_ep'), P.label('L_epd')
    P(f"""
    s_add_u32 {t0}, s2, {sW}
    s_cmp_lg_u32 {t0}, 0
    s_cbranch_scc1 {le}
    v_lshrrev_b32 {vt[0]}, 5, {v0}
    v_lshlrev_b32 {vt[0]}, 9, {vt[0]}
    v_and_b32 {vt[1]}, 31, {v0}
    v_lshl_add_u32 {vt[0]}, {vt[1]}, 2, {vt[0]}
    s_mov_b32 {t1}, {FA}
    s_mov_b32 {sNZ}, {SPIN}
    {lp}:""")
    for i in range(4):
        P(f"buffer_load_dword {vt[2 + i]}, {vt[0]}, {sWS}, {t1} offen offset:{1024 * i} sc1", optional=True)
    P("s_waitcnt vmcnt(0)")
    for i in range(4):
        P(f"v_xor_b32 {vt[2 + i]}, {sNN[0]}, {vt[2 + i]}")
    P(f"""
    v_or_b32 {vt[2]}, {vt[2]}, {vt[3]}
    v_or3_b32 {vt[2]}, {vt[2]}, {vt[4]}, {vt[5]}
    v_cmp_ne_u32 vcc, 0, {vt[2]}
    s_cbranch_vccz {lq}
    s_sub_u32 {sNZ}, {sNZ}, 1
    s_cbranch_scc0 {lp}
    {lq}:
    v_mov_b32 {vt[0]}, {E_OFF}
    v_mov_b32 {vt[1]}, {sNN[0]}
    s_mov_b64 exec, 1""")
    P(f"buffer_store_dword {vt[1]}, {vt[0]}, {sWS}, 0 offen sc1", optional=True)
    P(f"s_mov_b64 exec, -1\n{le}:")
    if stamps:
        P("s_waitcnt vmcnt(0)")
        prof.append('end')
        stamp('end')
        P("s_waitcnt lgkmcnt(0)")
        n = len(stamps)
        for i in range(max(0, n - 3), n):
            P(f"v_writelane_b32 {vStamp}, {sSt[2 * (i % 4)]}, {i}")
        P(f"""s_lshl_b32 {t0}, s2, 2
        s_add_u32 {t0}, {t0}, {sW}
        s_lshl_b32 {t0}, {t0}, 8
        s_add_u32 {t0}, {t0}, {TS}
        v_lshlrev_b32 {vt[0]}, 2, {v0}
        buffer_store_dword {vStamp}, {vt[0]}, {sWS}, {t0} offen""")
        if opt.get('dbg') is not None:
            ld = P.label('L_dbg')
            P(f"""s_lshl_b32 {t0}, s2, 2
            s_add_u32 {t0}, {t0}, {sW}
            s_cmp_lg_u32 {t0}, {4 * opt['dbg']}
            s_cbranch_scc1 {ld}
            s_load_dwordx2 {sX[0:2]}, s[0:1], 88
            v_readfirstlane_b32 {t1}, {vStamp}
            s_mov_b32 {sX[2]}, 256
            s_waitcnt lgkmcnt(0)
            v_subrev_u32 {vStamp}, {t1}, {vStamp}
            buffer_store_dword {vStamp}, {vt[0]}, {sX}, 0 offen
            {ld}:""")
    P("L_end:\ns_endpgm")

    errs = P.check_waits()
    npad = P.pad_hazards()
    info = dict(vgpr=V.hi, agpr=A.hi, sgpr=S.hi, npad=npad, nins=len(P.ins), errs=errs, stamps=[n for n, _ in stamps])
    return P, info


HEADER = """; Fused FNet Fourier mixing + spatial-shift / channel MLP, one persistent launch.
; 256 workgroups (one per CU), 4 waves each.  Generated by work/gen.py (hand-written instruction streams).
; @launch grid=(256,1,1) block=(256,1,1) lds=%d
""" % LDS_BYTES


def file_text(P):
    return (HEADER + '.amdgcn_target "amdgcn-amd-amdhsa--gfx950"\n.text\n' +
            f".globl {KNAME}\n.p2align 8\n.type {KNAME},@function\n{KNAME}:\n" + P.text() +
            f""".section .rodata,"a"
.p2align 6
.amdhsa_kernel {KNAME}
  .amdhsa_next_free_vgpr 512
  .amdhsa_next_free_sgpr 102
  .amdhsa_accum_offset 256
  .amdhsa_group_segment_fixed_size 0
  .amdhsa_kernarg_size 104
  .amdhsa_user_sgpr_count 2
  .amdhsa_user_sgpr_kernarg_segment_ptr 1
  .amdhsa_system_sgpr_workgroup_id_x 1
.end_amdhsa_kernel
""")


if __name__ == '__main__':
    out = sys.argv[1]
    opt = {}
    for a in sys.argv[2:]:
        k, v = a.split('=')
        opt[k] = v.split(',') if k == 'prof' else int(v)
    P, info = build(opt)
    open(out, 'w').write(file_text(P))
    open(out[:-2] + '.txt', 'w').write('\n'.join(info['stamps']))
    for e in info['errs']:
        print('WAIT-ERR', e)
    print({k: v for k, v in info.items() if k != 'errs'})
```

```python
import sys, math, struct
from kg import *

KNAME = "recurrent_scan__spectral_fnet__mixer_s_mlp__prompt_kernel"


def f2u(x):
    return struct.unpack('<I', struct.pack('<f', x))[0]


def hx(x):
    return hex(f2u(x))


E_OFF = 0
FH, FX, FH2, FA, FY, XID = 0x1000, 0x2000, 0x3000, 0x4000, 0x5000, 0x6000
STATS = 0x10000
HS, X1, H2, AT, YT, TS = 0x100000, 0x300000, 0x500000, 0xB00000, 0xD00000, 0x1000000
H2G = 172 * 1024
WS_BYTES = 0x10000000
R0, R1, R2 = 0, 65536, 131072
TIMG, EX = 147456, 156672
P0B, ZA = 131072, 151552
CS1, SM, SR, CS3 = 161792, 162048, 162336, 162624
RED = P0B
LDS_BYTES = 163840
SPIN = 60000


def build(opt):
    prof = list(opt.get('prof', []))
    P = Prog()
    V = Alloc('v', 256, 1)
    A = Alloc('a', 256)
    S = Alloc('s', 102, 40)
    sX, sW1, sW2, sW3, sW4, sWD, sWS, sOUT = [R('s', 4 + 4 * i, 4) for i in range(8)]
    sHID = R('s', 36, 4)
    v0 = R('v', 0, 1)
    stamps = []
    if prof:
        sSt = S.get(8, 2)
        vStamp = V.get()

    def stamp(name):
        if name in prof or 'all' in prof:
            n = len(stamps)
            if n >= 3:
                P(f"v_writelane_b32 {vStamp}, {sSt[2 * ((n - 3) % 4)]}, {n - 3}")
            stamps.append((name, None))
            P(f"{'s_memtime' if opt.get('cyc') else 's_memrealtime'} {sSt[2 * (n % 4):2 * (n % 4) + 2]}")

    ST = 'sc1'

    sW, sG, sJ, sSH, sC, sNZ = [S.get() for _ in range(6)]
    sNN = S.get(2, 2)
    sInv = S.get(2, 2)
    sFl = S.get(16, 4)
    t0, t1, t2, t3 = [S.get() for _ in range(4)]
    sOnes = S.get()
    stamp('entry')
    if opt.get('padto'):
        sPad = S.get(4, 2)
        P(f"s_memrealtime {sPad[0:2]}")
    P(f"""
    s_cmp_ge_u32 s2, 256
    s_cbranch_scc1 L_end
    s_load_dwordx2 {sX[0:2]}, s[0:1], 0
    s_load_dwordx2 {sW1[0:2]}, s[0:1], 48
    s_load_dwordx2 {sWS[0:2]}, s[0:1], 96
    s_load_dwordx4 {sHID}, s[0:1], 24
    """)
    vt = [V.get() for _ in range(8)]
    vL16, vLo4, vHi2 = V.get(), V.get(), V.get()
    P(f"""
    v_lshrrev_b32 {vt[0]}, 6, {v0}
    v_and_b32 {v0}, 63, {v0}
    s_and_b32 {t0}, s2, 7
    v_readfirstlane_b32 {sW}, {vt[0]}
    s_lshr_b32 {t1}, s2, 3
    s_lshl_b32 {t0}, {t0}, 2
    s_lshr_b32 {t2}, {t1}, 3
    s_add_u32 {sG}, {t0}, {t2}
    s_and_b32 {sJ}, {t1}, 7
    v_lshlrev_b32 {vL16}, 4, {v0}
    s_lshr_b32 {t0}, {sJ}, 2
    s_add_u32 {t0}, {t0}, 1
    s_sub_u32 {t1}, 0, {t0}
    s_bitcmp1_b32 {sJ}, 1
    s_cselect_b32 {sSH}, {t1}, {t0}
    s_mov_b32 {sX[2]}, {2048 * 1024}
    s_mov_b32 {sX[3]}, 0x20000
    s_mov_b32 {sW1[2]}, {512 * 1024}
    s_mov_b32 {sW1[3]}, 0x20000
    s_mov_b32 {sWS[2]}, {WS_BYTES}
    s_mov_b32 {sWS[3]}, 0x20000
    s_mov_b32 {sWD[2]}, {512 * 1024}
    s_mov_b32 {sWD[3]}, 0x20000
    """)
    sT0 = S.get()
    P(f"""
    s_lshl_b32 {sT0}, {sG}, 6
    s_sub_u32 {sT0}, {sT0}, {sSH}
    s_lshl_b32 {t0}, {sW}, 4
    s_add_u32 {sT0}, {sT0}, {t0}
    s_lshl_b32 {t3}, {sW}, 14
    s_mov_b32 m0, {t3}
    s_and_b32 {t1}, {sT0}, 2047
    s_lshl_b32 {t1}, {t1}, 10
    v_and_b32 {vLo4}, 15, {v0}
    v_lshrrev_b32 {vHi2}, 4, {v0}
    s_waitcnt lgkmcnt(0)
    """)
    stamp('kernarg')
    main = []
    for rho in range(16):
        L = []
        va = vt[rho % 2]
        if rho == 0:
            L.append(f"buffer_load_dwordx4 {vL16}, {sX}, {t1} offen lds")
        elif rho < 4 or rho >= 12:
            L.append(f"s_add_u32 m0, {t3}, {rho * 1024}\ns_add_u32 {t1}, {sT0}, {rho}\ns_and_b32 {t1}, {t1}, 2047\ns_lshl_b32 {t1}, {t1}, 10")
            L.append(f"v_xor_b32 {va}, {rho * 16}, {vL16}\nbuffer_load_dwordx4 {va}, {sX}, {t1} offen lds")
        else:
            if rho % 4 == 0:
                L.append(f"s_add_u32 m0, {t3}, {rho * 1024}\ns_add_u32 {t1}, {sT0}, {rho}\ns_lshl_b32 {t1}, {t1}, 10")
            L.append(f"v_xor_b32 {va}, {rho * 16}, {vL16}\nbuffer_load_dwordx4 {va}, {sX}, {t1} offen offset:{(rho % 4) * 1024} lds")
        main.append('\n'.join(L))
    P.emit(main[:8])
    P(f"""
    s_load_dwordx2 {sW2[0:2]}, s[0:1], 56
    s_load_dwordx2 {sW3[0:2]}, s[0:1], 64
    s_load_dwordx2 {sW4[0:2]}, s[0:1], 72
    s_load_dwordx2 {sOUT[0:2]}, s[0:1], 80
    s_load_dword {sNN[0]}, {sWS[0:2]}, {E_OFF}
    s_bitcmp1_b32 {sW}, 0
    s_cselect_b32 {sWD[0]}, {sHID[2]}, {sHID[0]}
    s_cselect_b32 {sWD[1]}, {sHID[3]}, {sHID[1]}
    """)
    main = main[8:]
    sOE = S.get()
    main.append(f"""
    s_cmp_gt_i32 {sSH}, 0
    s_cselect_b32 {sOE}, 64, -2
    s_and_b32 {t0}, {sW}, 1
    s_add_u32 {sOE}, {sOE}, {t0}
    s_lshl_b32 {t0}, {t0}, 10
    s_add_u32 m0, {t0}, {EX}
    s_lshl_b32 {t1}, {sG}, 6
    s_sub_u32 {t1}, {t1}, {sSH}
    s_add_u32 {t1}, {t1}, {sOE}
    s_and_b32 {t1}, {t1}, 2047
    s_lshl_b32 {t1}, {t1}, 10
    s_and_b32 {t0}, {sOE}, 15
    s_lshl_b32 {t0}, {t0}, 4
    v_xor_b32 {vt[0]}, {t0}, {vL16}
    buffer_load_dwordx4 {vt[0]}, {sX}, {t1} offen lds""")
    tok = {}
    main.append(lambda p: tok.__setitem__('x', p.vm_tok()))
    vWq = V.get(4)
    vPat = V.get()
    vR64 = V.get()
    main.append(f"""
    v_lshrrev_b32 {vt[2]}, 5, {v0}
    v_bfe_u32 {vt[3]}, {v0}, 2, 2
    v_lshl_add_u32 {vPat}, {vt[2]}, 2, {vt[3]}
    v_lshlrev_b32 {vR64}, 6, {vt[3]}
    v_and_b32 {vt[2]}, 1, {vHi2}
    v_lshlrev_b32 {vt[2]}, 6, {vt[2]}
    v_and_b32 {vt[3]}, 3, {v0}
    v_lshl_add_u32 {vt[2]}, {vt[3]}, 4, {vt[2]}
    v_lshl_add_u32 {vWq[0]}, {vPat}, 10, {vt[2]}
    v_xor_b32 {vWq[1]}, 16, {vWq[0]}
    v_add_u32 {vWq[1]}, 7168, {vWq[1]}
    v_add_u32 {vWq[2]}, {2 * 7168}, {vWq[0]}
    v_add_u32 {vWq[3]}, {2 * 7168}, {vWq[1]}""")
    sJ128 = S.get()

    def wtile_dma(srd, ldsbase, key):
        L = []
        for ch in range(4):
            if ch == 0:
                pre = f"""s_lshl_b32 {sJ128}, {sJ}, 7
                s_lshl_b32 {t1}, {sW}, 15
                s_add_u32 {t1}, {t1}, {sJ128}
                s_lshl_b32 {t0}, {sW}, 12
                s_add_u32 m0, {t0}, {ldsbase}
                """
            else:
                pre = f"s_add_u32 m0, m0, 16384\ns_add_u32 {t1}, {t1}, {4 * 32768}\n"
            for q in range(4):
                L.append((pre if q == 0 else '') + f"buffer_load_dwordx4 {vWq[q]}, {srd}, {t1} offen offset:{q * 1024} lds")
            L.append(lambda p, ch=ch: tok.__setitem__((key, ch), p.vm_tok()))
        return L
    main += wtile_dma(sW1, R1, 'w1')
    main.append(f"""
    v_xor_b32 {vt[2]}, {vLo4}, {vHi2}
    v_lshlrev_b32 {vt[2]}, 4, {vt[2]}
    v_lshl_add_u32 {vt[2]}, {vHi2}, 11, {vt[2]}
    s_cmp_lt_u32 {sW}, 2
    s_cselect_b32 {t0}, 2, 1
    s_lshl_b32 {t1}, {sJ}, 5
    s_add_u32 {t1}, {t1}, {t0}
    s_lshl_b32 {t1}, {t1}, 10
    s_lshl_b32 {t0}, {sW}, 12
    s_add_u32 m0, {t0}, {R2}
    s_nop 0
    buffer_load_dwordx4 {vt[2]}, {sWD}, {t1} offen lds""")
    for i in range(1, 4):
        main.append(f"""v_xor_b32 {vt[i % 2]}, {64 * i}, {vt[2]}
        v_add_u32 {vt[i % 2]}, {7168 * i}, {vt[i % 2]}
        buffer_load_dwordx4 {vt[i % 2]}, {sWD}, {t1} offen offset:{i * 1024} lds""")
    main.append(lambda p: tok.__setitem__('wd', p.vm_tok()))

    aF32 = A.get(16)
    aF64 = A.get(64)
    vTW = V.get(32)
    sEps = S.get()
    cg = []
    g0, g1, g2, g3 = [V.get() for _ in range(4)]
    gc, gs = V.get(8), V.get(8)
    gp = V.get(4)
    cg += f"""s_and_b32 {sEps}, {sW}, 1
    s_lshl_b32 {sEps}, {sEps}, 4
    v_add_u32 {g0}, {sEps}, {vLo4}
    s_lshr_b32 {sEps}, {sW}, 1
    s_mul_i32 {sEps}, {sEps}, 0x80008000
    v_cvt_f32_u32 {g0}, {g0}
    v_lshrrev_b32 {g1}, 1, {vHi2}
    v_and_b32 {g2}, 1, {vHi2}
    v_lshlrev_b32 {g1}, 4, {g1}
    v_lshl_add_u32 {g1}, {g2}, 2, {g1}
    v_cvt_f32_u32 {g1}, {g1}
    v_mul_f32 {g2}, {hx(1 / 2048)}, {g0}""".split('\n')
    for beta in range(4):
        off = 32 * (beta >> 1) + 8 * (beta & 1)
        for i in range(4):
            cg += [f"v_add_f32 {g3}, {hx(off + i)}, {g1}", f"v_mul_f32 {g3}, {g3}, {g2}",
                   f"v_cos_f32 {vTW[4 * beta + i]}, {g3}", f"v_sin_f32 {vTW[16 + 4 * beta + i]}, {g3}"]
    cg += [f"v_lshlrev_b32 {g3}, 3, {vHi2}", f"v_cvt_f32_u32 {g3}, {g3}", f"v_mul_f32 {g2}, {hx(1 / 32)}, {g0}"]
    for jj in range(8):
        cg += [f"v_add_f32 {g0}, {hx(jj)}, {g3}", f"v_mul_f32 {g0}, {g0}, {g2}", f"v_fract_f32 {g0}, {g0}",
               f"v_cos_f32 {gc[jj]}, {g0}", f"v_sin_f32 {gs[jj]}, {g0}"]
    for d in range(4):
        cg += [f"v_cvt_pk_bf16_f32 {gp[0]}, {gc[2 * d]}, {gc[2 * d + 1]}",
               f"v_cvt_pk_bf16_f32 {gp[1]}, {gs[2 * d]}, {gs[2 * d + 1]}",
               f"v_accvgpr_write_b32 {aF32[d]}, {gp[0]}",
               f"v_xor_b32 {gp[2]}, {sEps}, {gp[1]}",
               f"v_xor_b32 {gp[0]}, {sEps}, {gp[0]}",
               f"v_xor_b32 {gp[1]}, 0x80008000, {gp[1]}",
               f"v_accvgpr_write_b32 {aF32[4 + d]}, {gp[2]}",
               f"v_accvgpr_write_b32 {aF32[8 + d]}, {gp[0]}",
               f"v_accvgpr_write_b32 {aF32[12 + d]}, {gp[1]}"]
    cg += [f"v_cvt_f32_u32 {g2}, {vLo4}", f"v_mul_f32 {g2}, {hx(1 / 64)}, {g2}"]
    for beta in range(4):
        off = 32 * (beta >> 1) + 8 * (beta & 1)
        for i in range(4):
            cg += [f"v_add_f32 {g0}, {hx(off + i)}, {g1}", f"v_mul_f32 {g0}, {g0}, {g2}", f"v_fract_f32 {g0}, {g0}",
                   f"v_cos_f32 {gc[i]}, {g0}", f"v_sin_f32 {gs[i]}, {g0}"]
        for tau in range(4):
            def cs(i, kind):
                n = (i * tau) % 4
                c, s = gc[i], gs[i]
                return ([f"{c}", f"-{s}", f"-{c}", f"{s}"] if kind == 'c' else [f"{s}", f"{c}", f"-{s}", f"-{c}"])[n]
            base = 16 * beta + 4 * tau
            for d, (kind, i) in enumerate((('c', 0), ('c', 2), ('s', 0), ('s', 2))):
                cg.append(f"v_cvt_pk_bf16_f32 {gp[d]}, {cs(i, kind)}, {cs(i + 1, kind)}")
            for d in range(4):
                cg.append(f"v_accvgpr_write_b32 {aF64[base + d]}, {gp[d]}")
    P.emit(interleave(main, cg, lead=2))
    V.put(g0, g1, g2, g3, gc, gs, gp)
    stamp('issued')
    sE, sG2 = S.get(), S.get()
    P(f"""
    s_waitcnt lgkmcnt(0)
    s_add_u32 {sNN[0]}, {sNN[0]}, 1
    s_mov_b32 {sNN[1]}, {sNN[0]}
    s_mov_b32 {sW2[2]}, {512 * 1024}
    s_mov_b32 {sW2[3]}, 0x20000
    s_mov_b32 {sW3[2]}, {512 * 2752}
    s_mov_b32 {sW3[3]}, 0x20000
    s_mov_b32 {sW4[2]}, {1376 * 1024}
    s_mov_b32 {sW4[3]}, 0x20000
    s_mov_b32 {sOUT[2]}, {2048 * 1024}
    s_mov_b32 {sOUT[3]}, 0x20000
    s_mov_b32 {sOnes}, 0x3f803f80
    s_lshr_b32 {sG2}, {sG}, 1
    s_and_b32 {t0}, {sG}, 1
    s_lshl_b32 {t0}, {t0}, 3
    s_add_u32 {sC}, {t0}, {sJ}
    s_lshl_b32 {sE}, {sJ}, 5
    s_add_u32 {sE}, {sE}, {sG}
    s_add_u32 {sE}, {sE}, 1
    """)
    vDummy = V.get()
    if opt.get('warm', 1):
        la, lb, lc, ld = [P.label('L_warm') for _ in range(4)]
        P(f"""
        v_lshlrev_b32 {vt[0]}, 7, {v0}
        s_mul_i32 {t1}, s2, {43 * 128}
        s_cmp_eq_u32 {sW}, 0
        s_cbranch_scc0 {la}
        s_lshl_b32 {t1}, s2, 11
        s_mov_b64 exec, 0xffff
        """)
        P(f"buffer_load_dword {vDummy}, {vt[0]}, {sW2}, {t1} offen", optional=True)
        P(f"""s_branch {ld}
        {la}:
        s_mov_b32 exec_hi, 0x7ff
        s_cmp_eq_u32 {sW}, 1
        s_cbranch_scc0 {lb}""")
        P(f"buffer_load_dword {vDummy}, {vt[0]}, {sW3}, {t1} offen", optional=True)
        P(f"""s_branch {ld}
        {lb}:
        s_cmp_eq_u32 {sW}, 2
        s_cbranch_scc0 {lc}""")
        P(f"buffer_load_dword {vDummy}, {vt[0]}, {sW4}, {t1} offen", optional=True)
        P(f"""s_branch {ld}
        {lc}:
        s_mov_b64 exec, 0x3f
        v_lshlrev_b32 {vt[0]}, 12, {v0}
        s_and_b32 {t1}, s2, 31
        s_lshl_b32 {t1}, {t1}, 7
        s_add_u32 {t1}, {t1}, {FH}""")
        P(f"buffer_load_dword {vDummy}, {vt[0]}, {sWS}, {t1} offen sc1")
        P(f"{ld}:\ns_mov_b64 exec, -1")

    vX = V.get(64)
    vEx = V.get(4)
    vA0 = V.get(4)
    P(f"""
    v_xor_b32 {vt[0]}, {vHi2}, {vLo4}
    v_lshlrev_b32 {vt[0]}, 4, {vt[0]}
    v_lshl_add_u32 {vt[0]}, {vLo4}, 10, {vt[0]}
    v_add_u32 {vA0[0]}, {t3}, {vt[0]}
    v_xor_b32 {vA0[1]}, 64, {vA0[0]}
    v_xor_b32 {vA0[2]}, 128, {vA0[0]}
    v_xor_b32 {vA0[3]}, 192, {vA0[0]}
    s_and_b32 {t0}, {sW}, 1
    s_lshl_b32 {t0}, {t0}, 10
    s_add_u32 {t0}, {t0}, {EX}
    v_add_u32 {vt[1]}, {t0}, {vL16}
    """)
    P(f"""
    v_add_u32 {vt[2]}, {sT0}, {vLo4}
    v_cmp_lt_u32 {sInv}, 2047, {vt[2]}""".replace("2047, ", "vcc_lo, ") if False else f"""
    v_add_u32 {vt[2]}, {sT0}, {vLo4}
    v_cmp_lt_u32 vcc, 2047, {vt[2]}
    s_mov_b64 {sInv}, vcc""")
    ss = V.get(2); qq = V.get(2); es = V.get(); eq = V.get()
    P(f"""
    v_mov_b32 {ss[0]}, 0
    v_mov_b32 {ss[1]}, 0
    v_mov_b32 {qq[0]}, 0
    v_mov_b32 {qq[1]}, 0
    v_mov_b32 {es}, 0
    v_mov_b32 {eq}, 0""")
    P.wait(tok['x'])
    stamp('x_landed')
    xt = []
    for k in range(16):
        xt.append(P(f"ds_read_b128 {vX[4 * k:4 * k + 4]}, {vA0[k % 4]} offset:{256 * (k // 4)}"))
        if k == 11:
            pass
    te = P(f"ds_read_b128 {vEx}, {vt[1]}")
    for k in range(16):
        P.wait(xt[k])
        for d in range(4):
            P(f"v_dot2c_f32_bf16 {ss[d % 2]}, {sOnes}, {vX[4 * k + d]}\nv_dot2c_f32_bf16 {qq[d % 2]}, {vX[4 * k + d]}, {vX[4 * k + d]}")
    P.wait(te)
    for d in range(4):
        P(f"v_dot2c_f32_bf16 {es}, {sOnes}, {vEx[d]}\nv_dot2c_f32_bf16 {eq}, {vEx[d]}, {vEx[d]}")
    P(f"v_add_f32 {ss[0]}, {ss[0]}, {ss[1]}\nv_add_f32 {qq[0]}, {qq[0]}, {qq[1]}")
    four = [ss[0], qq[0], es, eq]
    for op in ('v_permlane32_swap_b32', 'v_permlane16_swap_b32'):
        for n, r in enumerate(four):
            P(f"v_mov_b32 {vt[4 + n]}, {r}")
        for n, r in enumerate(four):
            P(f"{op} {r}, {vt[4 + n]}")
        for n, r in enumerate(four):
            P(f"v_add_f32 {r}, {r}, {vt[4 + n]}")
    for rot in (8, 4, 2, 1):
        for r in (es, eq):
            P(f"v_add_f32_dpp {r}, {r}, {r} row_ror:{rot} row_mask:0xf bank_mask:0xf")
    vS0 = V.get(2)
    vS1 = V.get(2)
    C0 = -2.0 * math.sqrt(2.0 / math.pi) * math.log2(math.e)
    C1 = C0 * 0.044715
    mean, var, r1 = ss[0], qq[0], ss[1]
    P(f"""
    v_mul_f32 {mean}, {hx(1 / 512)}, {mean}
    v_mul_f32 {es}, {hx(1 / 512)}, {es}
    v_mul_f32 {var}, {hx(1 / 512)}, {var}
    v_mul_f32 {eq}, {hx(1 / 512)}, {eq}
    v_fma_f32 {var}, -{mean}, {mean}, {var}
    v_fma_f32 {eq}, -{es}, {es}, {eq}
    v_max_f32 {var}, 0, {var}
    v_max_f32 {eq}, 0, {eq}
    v_add_f32 {r1}, {hx(1e-5)}, {var}
    v_add_f32 {eq}, {hx(1e-5)}, {eq}
    v_rsq_f32 {r1}, {r1}
    v_rsq_f32 {eq}, {eq}
    s_lshl_b32 {t0}, {sW}, 4
    s_sub_u32 {t0}, {t0}, {sSH}
    s_lshl_b32 {t0}, {t0}, 2
    s_add_u32 {t0}, {t0}, {SM + 16}
    v_lshl_add_u32 {vt[4]}, {vLo4}, 2, {t0}
    s_sub_u32 {t0}, {sOE}, {sSH}
    s_lshl_b32 {t0}, {t0}, 2
    s_add_u32 {t0}, {t0}, {SM + 16}
    v_mov_b32 {vt[5]}, {t0}
    s_mov_b64 exec, 0xffff
    ds_write_b32 {vt[4]}, {mean}
    ds_write_b32 {vt[4]}, {r1} offset:{SR - SM}
    s_mov_b64 exec, 1
    ds_write_b32 {vt[5]}, {es}
    ds_write_b32 {vt[5]}, {eq} offset:{SR - SM}
    s_mov_b64 exec, -1
    v_mul_f32 {var}, {var}, {r1}
    v_fma_f32 {var}, {var}, {r1}, {qq[1]}""".replace(f"v_fma_f32 {var}, {var}, {r1}, {qq[1]}", f"v_mul_f32 {var}, {var}, {r1}"))
    P(f"""
    v_add_f32 {var}, {hx(1e-5)}, {var}
    v_rsq_f32 {var}, {var}
    v_sub_f32 {vS0[0]}, 0, {mean}
    v_mul_f32 {var}, {var}, {r1}
    v_rcp_f32 {vS1[1]}, {var}
    v_mul_f32 {vS1[0]}, {hx(C0)}, {var}
    v_mul_f32 {r1}, {var}, {var}
    v_mul_f32 {r1}, {r1}, {var}
    v_mul_f32 {vS0[1]}, {hx(C1)}, {r1}""")
    V.put(ss, qq, es, eq, vEx)
    vU0, vXr, vXf, vSt = V.get(), V.get(), V.get(), V.get()

    def unshifted_base(dst, key, urow):
        return f"""
        v_add_u32 {key}, {sSH}, {urow}
        v_and_b32 {vt[7]}, 1, {key}
        v_lshlrev_b32 {vt[7]}, 10, {vt[7]}
        v_add_u32 {vt[7]}, {EX}, {vt[7]}
        v_lshlrev_b32 {dst}, 10, {key}
        v_cmp_gt_u32 vcc, 64, {key}
        v_and_b32 {key}, 15, {key}
        v_cndmask_b32 {dst}, {vt[7]}, {dst}, vcc"""
    P(f"s_lshl_b32 {t0}, {sW}, 4\nv_add_u32 {vt[4]}, {t0}, {vLo4}")
    P(f"v_lshlrev_b32 {vSt}, 2, {vt[4]}\nv_add_u32 {vSt}, {SM + 16}, {vSt}")
    P(unshifted_base(vt[5], vt[6], vt[4]))
    P(f"""
    v_xor_b32 {vt[4]}, {vHi2}, {vt[6]}
    v_lshl_add_u32 {vU0}, {vt[4]}, 4, {vt[5]}
    s_lshr_b32 {t0}, {sW}, 1
    s_lshl_b32 {t0}, {t0}, 2
    s_and_b32 {t1}, {sW}, 1
    s_add_u32 {t0}, {t0}, {t1}
    s_lshl_b32 {t1}, {sJ}, 3
    s_add_u32 {t0}, {t0}, {t1}
    v_and_b32 {vt[4]}, 2, {vHi2}
    v_add_u32 {vt[4]}, {t0}, {vt[4]}
    v_xor_b32 {vt[4]}, {vt[4]}, {vt[6]}
    v_lshl_add_u32 {vXr}, {vt[4]}, 4, {vt[5]}
    v_and_b32 {vt[4]}, 1, {vHi2}
    v_lshl_add_u32 {vXr}, {vt[4]}, 3, {vXr}
    s_and_b32 {t0}, {sW}, 1
    s_lshl_b32 {t0}, {t0}, 5
    v_and_b32 {vt[4]}, 31, {v0}
    v_add_u32 {vt[4]}, {t0}, {vt[4]}""")
    P(unshifted_base(vt[5], vt[6], vt[4]))
    P(f"""
    s_lshr_b32 {t0}, {sW}, 1
    s_lshl_b32 {t0}, {t0}, 2
    s_add_u32 {t0}, {t0}, {t1}
    v_and_b32 {vt[4]}, 2, {vHi2}
    v_add_u32 {vt[4]}, {t0}, {vt[4]}
    v_xor_b32 {vt[4]}, {vt[4]}, {vt[6]}
    v_lshl_add_u32 {vXf}, {vt[4]}, 4, {vt[5]}""")
    vB = V.get(4)
    vZp = V.get()
    P(f"""
    v_and_b32 {vt[4]}, 2, {v0}
    v_and_b32 {vt[5]}, 1, {vHi2}
    v_xor_b32 {vt[4]}, {vt[4]}, {vt[5]}
    v_lshlrev_b32 {vt[4]}, 4, {vt[4]}
    v_and_b32 {vt[5]}, 1, {v0}
    v_lshl_add_u32 {vt[4]}, {vt[5]}, 3, {vt[4]}
    v_add_u32 {vt[4]}, {vt[4]}, {vR64}
    v_lshl_add_u32 {vZp}, {vHi2}, 10, {vt[4]}
    s_and_b32 {t0}, {sW}, 1
    s_lshl_b32 {t0}, {t0}, 4
    s_lshr_b32 {t1}, {sW}, 1
    s_lshl_b32 {t1}, {t1}, 8
    s_add_u32 {t0}, {t0}, {t1}
    v_xor_b32 {vB[0]}, {t0}, {vZp}
    v_add_u32 {vB[0]}, {R1}, {vB[0]}
    v_xor_b32 {vB[1]}, 16, {vB[0]}
    v_xor_b32 {vB[2]}, 256, {vB[0]}
    v_xor_b32 {vB[3]}, 272, {vB[0]}""")
    vOnes = V.get(4)
    for d in range(4):
        P(f"v_mov_b32 {vOnes[d]}, {sOnes}")
    stamp('stats')

    aXU = A.get(64)
    aRing = A.get(32)
    vXres = V.get(8)
    vXF = V.get(8)
    vMu = V.get(2)
    acc = V.get(16)
    vCs = V.get(16)
    D = 6

    def gemm16(xfrag, bar_before, extra, ones, init_zero, a_wait=None):
        toks = {}

        def rd(n):
            if n in bar_before:
                bar_before[n]()
            k, sg = divmod(n, 4)
            r = aRing[4 * (n % 8):4 * (n % 8) + 4]
            P(f"ds_read_b64_tr_b16 {r[0:2]}, {vB[sg]} offset:{k * 4096}")
            toks[n] = P(f"ds_read_b64_tr_b16 {r[2:4]}, {vB[sg]} offset:{k * 4096 + 512}")
        for n in range(D):
            rd(n)
        for n in range(64):
            k, sg = divmod(n, 4)
            if n + D < 64:
                rd(n + D)
            w = [toks[n]]
            if a_wait and sg == 0:
                w.append(a_wait(k))
            P.wait(*w)
            r = aRing[4 * (n % 8):4 * (n % 8) + 4]
            c = '0' if (init_zero and k == 0) else acc[4 * sg:4 * sg + 4]
            if ones and sg == 0:
                P(f"v_mfma_f32_16x16x32_bf16 {vCs[0:4]}, {r}, {vOnes}, {'0' if k == 0 else vCs[0:4]}")
            P(f"v_mfma_f32_16x16x32_bf16 {acc[4 * sg:4 * sg + 4]}, {r}, {xfrag(k)}, {c}")
            P.emit(extra.get(n, []))

    def w1bar(ch):
        def f():
            if ch == 0:
                P.wait(tok[('w1', 0)], P.lg_tok())
                P("s_barrier")
                stamp('w1_0')
                for k in range(16):
                    if k % 4:
                        P(f"v_xor_b32 {vt[k % 2]}, {64 * (k % 4)}, {vU0}")
                    P(f"ds_read_b128 {aXU[4 * k:4 * k + 4]}, {vt[k % 2] if k % 4 else vU0} offset:{256 * (k // 4)}")
                for sg in range(4):
                    x = (4 * (sg >> 1) + (sg & 1)) * 16
                    if x:
                        P(f"v_xor_b32 {vt[sg % 2]}, {x}, {vXr}")
                    P(f"ds_read_b64 {vXres[2 * sg:2 * sg + 2]}, {vt[sg % 2] if x else vXr}")
                P(f"""ds_read_b128 {vXF[0:4]}, {vXf}
                v_xor_b32 {vt[0]}, 16, {vXf}
                ds_read_b128 {vXF[4:8]}, {vt[0]}
                ds_read_b32 {vMu[0]}, {vSt}""")
                tok['xu'] = P(f"ds_read_b32 {vMu[1]}, {vSt} offset:{SR - SM}")
            else:
                w = [tok[('w1', ch)]]
                if ch == 1:
                    w.append(tok['xu'])
                P.wait(*w)
                P("s_barrier")
                if ch == 3:
                    stamp('w1_3')
        return f
    w2l = wtile_dma(sW2, R0, 'w2')
    extra = {}
    for n, it in enumerate(w2l):
        extra.setdefault(16 - D + 2 * n, []).append(it)
    gemm16(lambda k: vX[4 * k:4 * k + 4], {0: w1bar(0), 16: w1bar(1), 32: w1bar(2), 48: w1bar(3)}, extra, True, True)
    V.put(vU0, vXr, vXf, vSt, vA0, vX)
    stamp('gemm1')
    P(f"""
    s_lshl_b32 {t0}, {sW}, 6
    s_add_u32 {t0}, {t0}, {CS1}
    v_lshl_add_u32 {vt[0]}, {vHi2}, 4, {t0}
    v_xor_b32 {vt[1]}, 64, {vt[0]}
    v_xor_b32 {vt[2]}, 128, {vt[0]}
    v_xor_b32 {vt[3]}, 192, {vt[0]}
    s_mov_b32 exec_lo, 0x00010001
    s_mov_b32 exec_hi, 0x00010001
    ds_write_b128 {vt[0]}, {vCs[0:4]}
    s_mov_b64 exec, -1""")
    P.wait(tok['wd'], P.lg_tok())
    P("s_barrier")
    ct = [None] + [P(f"ds_read_b128 {vCs[4 * sg:4 * sg + 4]}, {vt[sg]}") for sg in range(1, 4)]
    aWd = A.get(64)
    P(f"""
    v_xor_b32 {vt[4]}, {vHi2}, {vLo4}
    v_lshlrev_b32 {vt[4]}, 4, {vt[4]}
    v_lshl_add_u32 {vt[4]}, {vLo4}, 8, {vt[4]}
    v_add_u32 {vt[4]}, {R2}, {vt[4]}
    v_xor_b32 {vt[5]}, 64, {vt[4]}
    v_xor_b32 {vt[6]}, 128, {vt[4]}
    v_xor_b32 {vt[7]}, 192, {vt[4]}""")
    wdr = [f"ds_read_b128 {aWd[16 * t + 4 * k:16 * t + 4 * k + 4]}, {vt[4 + k]} offset:{4096 * t}" for k in range(4) for t in range(4)]

    vTmp = V.get(8)
    vO = V.get(8)

    def gelu_pk(a, cs, o, tmp, s0, s1):
        return [f"v_pk_fma_f32 {a}, {cs}, {s0}, {a} op_sel_hi:[1,0,1]",
                f"v_pk_mul_f32 {tmp}, {a}, {a}",
                f"v_pk_fma_f32 {tmp}, {tmp}, {s0}, {s1} op_sel:[0,1,0] op_sel_hi:[1,1,0]",
                f"v_pk_mul_f32 {tmp}, {tmp}, {a}",
                f"v_exp_f32 {tmp[0]}, {tmp[0]}", f"v_exp_f32 {tmp[1]}, {tmp[1]}",
                f"v_pk_fma_f32 {tmp}, {tmp}, {s1}, {s1} op_sel:[0,1,1] op_sel_hi:[1,1,1]",
                f"v_rcp_f32 {tmp[0]}, {tmp[0]}", f"v_rcp_f32 {tmp[1]}, {tmp[1]}",
                f"v_pk_mul_f32 {tmp}, {tmp}, {a}",
                f"v_cvt_pk_bf16_f32 {o}, {tmp[0]}, {tmp[1]}"]

    def zip2(a, b):
        out = []
        for x, y in zip(a, b):
            out += [x, y]
        return out
    for sg in range(4):
        if sg:
            P.wait(ct[sg])
        seq = zip2(gelu_pk(acc[4 * sg:4 * sg + 2], vCs[4 * sg:4 * sg + 2], vO[2 * sg], vTmp[0:2], vS0, vS1),
                   gelu_pk(acc[4 * sg + 2:4 * sg + 4], vCs[4 * sg + 2:4 * sg + 4], vO[2 * sg + 1], vTmp[2:4], vS0, vS1))
        P.emit(interleave(seq, wdr[4 * sg + 4:4 * sg + 8] if sg < 3 else [], lead=0) if sg else interleave(seq, wdr[0:8], lead=8))
    tok['wdr'] = P.lg_tok()
    V.put(vCs)
    vSTo = V.get()
    sSo = S.get(2, 2)
    P(f"""
    s_and_b32 {t0}, {sW}, 1
    v_xor_b32 {vt[0]}, {t0}, {vHi2}
    v_lshlrev_b32 {vt[0]}, 10, {vt[0]}
    s_lshl_b32 {t0}, {sW}, 8
    v_lshl_add_u32 {vt[1]}, {vLo4}, 4, {t0}
    v_add_u32 {vSTo}, {vt[0]}, {vt[1]}
    s_lshl_b32 {t0}, {sG}, 16
    s_lshl_b32 {t1}, {sJ}, 13
    s_add_u32 {t0}, {t0}, {t1}
    s_lshr_b32 {t1}, {sW}, 1
    s_lshl_b32 {t1}, {t1}, 12
    s_add_u32 {sSo[0]}, {t0}, {t1}
    s_xor_b32 {sSo[1]}, {sSo[0]}, 4096""")

    def swap_store(base):
        for v in range(2):
            for d in range(2):
                P(f"v_permlane16_swap_b32 {vO[4 * v + d]}, {vO[4 * v + 2 + d]}")
        P(f"s_add_u32 {t0}, {sSo[0]}, {base}\ns_add_u32 {t1}, {sSo[1]}, {base}")
        P(f"buffer_store_dwordx4 {vO[0:4]}, {vSTo}, {sWS}, {t0} offen {ST}")
        return P(f"buffer_store_dwordx4 {vO[4:8]}, {vSTo}, {sWS}, {t1} offen {ST}")
    lz = P.label('L_nozero')
    P(f"s_mov_b64 exec, {sInv}\ns_cbranch_execz {lz}")
    for d in range(8):
        P(f"v_mov_b32 {vO[d]}, 0")
    P(f"{lz}:\ns_mov_b64 exec, -1")
    tok['hst'] = swap_store(HS)
    stamp('h_stored')

    vW3q = V.get(4)
    sW3o = S.get()
    P(f"""
    s_movk_i32 {t0}, 2752
    v_mul_u32_u24 {vt[0]}, {t0}, {vPat}
    v_and_b32 {vt[1]}, 1, {vHi2}
    v_lshlrev_b32 {vt[1]}, 6, {vt[1]}
    v_and_b32 {vt[2]}, 3, {v0}
    v_lshl_add_u32 {vt[1]}, {vt[2]}, 4, {vt[1]}
    v_add_u32 {vW3q[0]}, {vt[0]}, {vt[1]}
    v_add_u32 {vW3q[1]}, {8 * 2752 - 1024}, {vW3q[0]}
    v_add_u32 {vW3q[2]}, {2 * (8 * 2752 - 1024)}, {vW3q[0]}
    v_add_u32 {vW3q[3]}, {3 * (8 * 2752 - 1024)}, {vW3q[0]}
    s_mul_i32 {sW3o}, {sW}, {128 * 2752}
    s_lshl_b32 {t0}, {sC}, 7
    s_add_u32 {sW3o}, {sW3o}, {t0}
    s_lshl_b32 {t0}, {sW}, 14
    s_add_u32 m0, {t0}, {R1}""")
    w3a = []
    for i in range(4):
        for q in range(4):
            pre = f"s_add_u32 m0, m0, 4096\ns_add_u32 {sW3o}, {sW3o}, {32 * 2752}\n" if (i and q == 0) else ''
            w3a.append(pre + f"buffer_load_dwordx4 {vW3q[q]}, {sW3}, {sW3o} offen offset:{q * 1024} lds")
    dE = V.get(16)
    dO = V.get(32)
    dC = V.get(8)
    mf = []
    for q in range(4):
        for k in range(4):
            xa = aXU[16 * q + 4 * k:16 * q + 4 * k + 4]
            for t in range(4):
                if t < 2:
                    d = dE[8 * t + 4 * (q & 1):8 * t + 4 * (q & 1) + 4]
                    first = q < 2 and k == 0
                else:
                    d = dO[16 * (t - 2) + 4 * q:16 * (t - 2) + 4 * q + 4]
                    first = k == 0
                mf.append(f"v_mfma_f32_16x16x32_bf16 {d}, {xa}, {aWd[16 * t + 4 * k:16 * t + 4 * k + 4]}, {'0' if first else d}")
            if q == 0:
                for t in range(2):
                    d = dC[4 * t:4 * t + 4]
                    mf.append(f"v_mfma_f32_16x16x32_bf16 {d}, {vOnes}, {aWd[16 * t + 4 * k:16 * t + 4 * k + 4]}, {'0' if k == 0 else d}")
    ini = [f"v_mul_f32 {vMu[0]}, {vMu[0]}, {vMu[1]}"]
    for d in range(8):
        ini += [f"v_lshlrev_b32 {acc[2 * d]}, 16, {vXres[d]}", f"v_and_b32 {acc[2 * d + 1]}, 0xffff0000, {vXres[d]}",
                f"v_fma_f32 {acc[2 * d]}, {acc[2 * d]}, {vMu[1]}, -{vMu[0]}", f"v_fma_f32 {acc[2 * d + 1]}, {acc[2 * d + 1]}, {vMu[1]}, -{vMu[0]}"]
    P.wait(tok['wdr'])
    HP = opt.get('hflag_at', 56)
    P.emit(interleave(mf[:HP], zip2(w3a, ini[:16]) + ini[16:], lead=0))
    vFl = V.get(2)

    def wg_flag(off_expr):
        l = P.label('L_flag')
        P(f"s_cmp_lg_u32 {sW}, 0\ns_cbranch_scc1 {l}")
        P(off_expr)
        P(f"v_mov_b32 {vFl[0]}, 0\nv_mov_b32 {vFl[1]}, {sNN[0]}\ns_mov_b64 exec, 1")
        P(f"buffer_store_dword {vFl[1]}, {vFl[0]}, {sWS}, {t0} offen {ST}", optional=True)
        P(f"s_mov_b64 exec, -1\n{l}:")

    def wave_flag(off_expr):
        P(off_expr)
        P(f"v_mov_b32 {vFl[0]}, 0\nv_mov_b32 {vFl[1]}, {sNN[0]}\ns_mov_b64 exec, 1")
        P(f"buffer_store_dword {vFl[1]}, {vFl[0]}, {sWS}, {t0} offen sc1")
        P("s_mov_b64 exec, -1")

    def poll_issue(off, n):
        P(f"s_load_dwordx{n} {sFl[0:n]}, {sWS[0:2]}, {off} glc")

    def poll_check(off, n, issued=False):
        l, l2, l3 = P.label('L_poll'), P.label('L_pdone'), P.label('L_pchk')
        P(f"s_mov_b32 {sNZ}, {SPIN}")
        if issued:
            P(f"s_branch {l3}")
        P(f"{l}:")
        poll_issue(off, n)
        if issued:
            P(f"{l3}:")
        P("s_waitcnt lgkmcnt(0)")
        for i in range(0, n, 2):
            P(f"s_xor_b64 {sFl[i:i + 2]}, {sFl[i:i + 2]}, {sNN}")
        m = n
        while m > 2:
            m //= 2
            for i in range(0, m, 2):
                P(f"s_or_b64 {sFl[i:i + 2]}, {sFl[i:i + 2]}, {sFl[i + m:i + m + 2]}")
        P(f"""s_cbranch_scc0 {l2}
        s_sub_u32 {sNZ}, {sNZ}, 1
        s_cbranch_scc0 {l}
        {l2}:""")

    def wg_poll(off_expr, n):
        l = P.label('L_wgp')
        if opt.get('allpoll'):
            P(off_expr)
            poll_check(t2, n)
            return
        P(f"s_cmp_lg_u32 {sW}, 0\ns_cbranch_scc1 {l}")
        P(off_expr)
        poll_check(t2, n)
        P(f"{l}:")

    P.wait(tok['hst'])
    P("s_barrier")
    wg_flag(f"s_lshl_b32 {t0}, {sG}, 7\ns_lshl_b32 {t1}, {sJ}, 2\ns_add_u32 {t0}, {t0}, {t1}\ns_add_u32 {t0}, {t0}, {FH}")
    stamp('h_flag')
    P.emit(mf[HP:])
    vRm, vRr = V.get(4), V.get(4)
    vSg = V.get(2)
    P(f"""
    s_lshl_b32 {t0}, {sW}, 6
    s_add_u32 {t0}, {t0}, {SM + 16}
    v_lshl_add_u32 {vt[0]}, {vHi2}, 4, {t0}
    ds_read_b128 {vRm}, {vt[0]}""")
    tok['rr'] = P(f"ds_read_b128 {vRr}, {vt[0]} offset:{SR - SM}")
    P(f"""
    v_and_b32 {vt[1]}, 1, {v0}
    v_lshlrev_b32 {vt[1]}, 31, {vt[1]}
    v_xor_b32 {vSg[0]}, {hx(-1.0)}, {vt[1]}
    v_add_f32 {vSg[1]}, 1.0, {vSg[0]}
    v_mul_f32 {vSg[1]}, -2.0, {vSg[1]}""")
    stamp('dft_mfma')
    wg_poll(f"s_lshl_b32 {t2}, {sG}, 7\ns_add_u32 {t2}, {t2}, {FH}", 8)
    if not opt.get('allpoll'):
        P("s_barrier")
    stamp('h_seen')

    aH = aXU
    vLDo = V.get()
    sLo = S.get()
    P(f"""
    s_lshl_b32 {t0}, {sW}, 8
    v_lshl_add_u32 {vt[0]}, {vLo4}, 4, {t0}
    v_lshl_add_u32 {vLDo}, {vHi2}, 10, {vt[0]}
    s_lshl_b32 {sLo}, {sG}, 16
    s_add_u32 {sLo}, {sLo}, {HS}""")
    ht = {}

    def hload(k):
        def f(p):
            ht[k] = p(f"buffer_load_dwordx4 {aH[4 * k:4 * k + 4]}, {vLDo}, {sWS}, {sLo} offen sc1")
            if k < 15:
                p(f"s_add_u32 {sLo}, {sLo}, 4096")
        return f
    for k in range(10):
        hload(k)(P)
    for sg in range(4):
        P(f"v_subrev_u32 {vB[sg]}, {R1}, {vB[sg]}")
    ep = []
    kc, km = vt[0], vt[1]
    ep += [f"v_mul_f32 {kc}, {vSg[1]}, {dC[0]}", f"v_mul_f32 {km}, {vSg[1]}, {dC[4]}"]
    vK = vTmp[4:6]
    ep += [f"v_mov_b32 {vK[0]}, {kc}", f"v_mov_b32 {vK[1]}, {km}"]
    for h in range(2):
        sl = slice(2 * h, 2 * h + 2)
        for t in range(2):
            e0, e1 = dE[8 * t:8 * t + 4][sl], dE[8 * t + 4:8 * t + 8][sl]
            ep += [f"v_pk_fma_f32 {e0}, {e1}, {vSg}, {e0} op_sel_hi:[1,0,1]",
                   f"v_pk_fma_f32 {e0}, {vRm[sl]}, {vK}, {e0} op_sel:[0,{t},0] op_sel_hi:[1,{t},1]",
                   f"v_pk_mul_f32 {e0}, {e0}, {vRr[sl]}",
                   f"v_cvt_pk_bf16_f32 {vO[2 * t + h]}, {e0[0]}, {e0[1]}"]
        C = [dO[4 * q:4 * q + 4][sl] for q in range(4)]
        M = [dO[16 + 4 * q:16 + 4 * q + 4][sl] for q in range(4)]
        neg = "neg_lo:[0,1] neg_hi:[0,1]"
        ep += [f"v_pk_add_f32 {C[0]}, {C[0]}, {C[2]} {neg}", f"v_pk_add_f32 {M[1]}, {M[1]}, {M[3]} {neg}",
               f"v_pk_add_f32 {M[0]}, {M[0]}, {M[2]} {neg}", f"v_pk_add_f32 {C[1]}, {C[1]}, {C[3]} {neg}",
               f"v_pk_fma_f32 {C[0]}, {M[1]}, {vSg}, {C[0]} op_sel_hi:[1,0,1] neg_lo:[0,1,0] neg_hi:[0,1,0]",
               f"v_pk_fma_f32 {M[0]}, {C[1]}, {vSg}, {M[0]} op_sel_hi:[1,0,1]",
               f"v_pk_mul_f32 {C[0]}, {C[0]}, {vRr[sl]}", f"v_pk_mul_f32 {M[0]}, {M[0]}, {vRr[sl]}",
               f"v_cvt_pk_bf16_f32 {vO[4 + h]}, {C[0][0]}, {C[0][1]}", f"v_cvt_pk_bf16_f32 {vO[6 + h]}, {M[0][0]}, {M[0][1]}"]
    P.wait(tok['rr'])
    P.emit(interleave(ep, [hload(k) for k in range(10, 16)], lead=2))
    P(f"""
    s_movk_i32 {t0}, 144
    v_mul_u32_u24 {vt[2]}, {t0}, {vLo4}
    v_lshl_add_u32 {vt[2]}, {vHi2}, 3, {vt[2]}
    s_lshl_b32 {t1}, {sW}, 5
    s_add_u32 {t1}, {t1}, {TIMG}
    v_add_u32 {vt[2]}, {t1}, {vt[2]}""")
    for t in range(4):
        P(f"ds_write_b64 {vt[2]}, {vO[2 * t:2 * t + 2]} offset:{t * 16 * 144}")
    P(f"""
    v_lshrrev_b32 {vt[3]}, 3, {v0}
    v_lshrrev_b32 {vt[4]}, 1, {vt[3]}
    s_lshl_b32 {t1}, {sW}, 2
    v_add_u32 {vt[4]}, {t1}, {vt[4]}
    v_and_b32 {vt[5]}, 1, {vt[3]}
    v_xor_b32 {vt[5]}, 1, {vt[5]}
    v_lshl_add_u32 {vt[4]}, {vt[5]}, 5, {vt[4]}
    v_mul_u32_u24 {vt[4]}, {t0}, {vt[4]}
    v_and_b32 {vt[5]}, 7, {v0}
    v_lshl_add_u32 {vt[4]}, {vt[5]}, 4, {vt[4]}
    v_add_u32 {vt[4]}, {TIMG}, {vt[4]}
    v_lshlrev_b32 {vt[3]}, 13, {vt[3]}
    v_lshl_add_u32 {vt[3]}, {vt[5]}, 4, {vt[3]}
    s_lshl_b32 {t0}, {sJ}, 2
    s_add_u32 {t0}, {t0}, {sW}
    s_lshl_b32 {t0}, {t0}, 16
    s_lshl_b32 {t1}, {sG}, 7
    s_add_u32 {t0}, {t0}, {t1}
    s_add_u32 {t0}, {t0}, {AT}
    s_add_u32 {t1}, {t0}, 4096
    s_waitcnt lgkmcnt(0)
    s_barrier""")
    a0 = P(f"ds_read_b128 {vO[0:4]}, {vt[4]}")
    a1 = P(f"ds_read_b128 {vO[4:8]}, {vt[4]} offset:{16 * 144}")
    V.put(dE, dO, dC, vRm, vRr, vSg, vXres, vMu)
    A.put(aWd)

    def atst(p):
        p.wait(a0)
        p(f"buffer_store_dwordx4 {vO[0:4]}, {vt[3]}, {sWS}, {t0} offen sc1")
        p.wait(a1)
        p(f"buffer_store_dwordx4 {vO[4:8]}, {vt[3]}, {sWS}, {t1} offen sc1")
    stamp('dft_done')
    gemm16(lambda k: aH[4 * k:4 * k + 4], {}, {0: [atst]}, False, False, a_wait=lambda k: ht[k])
    stamp('gemm2')
    for d in range(8):
        P(f"v_cvt_pk_bf16_f32 {vO[d]}, {acc[2 * d]}, {acc[2 * d + 1]}")
    swap_store(X1)
    su, sq = vTmp[0:2], vTmp[2:4]
    P(f"v_pk_add_f32 {su}, {acc[0:2]}, {acc[2:4]}\nv_pk_mul_f32 {sq}, {acc[0:2]}, {acc[0:2]}\nv_pk_fma_f32 {sq}, {acc[2:4]}, {acc[2:4]}, {sq}")
    for d in range(2, 8):
        P(f"v_pk_add_f32 {su}, {su}, {acc[2 * d:2 * d + 2]}\nv_pk_fma_f32 {sq}, {acc[2 * d:2 * d + 2]}, {acc[2 * d:2 * d + 2]}, {sq}")
    P(f"v_add_f32 {su[0]}, {su[0]}, {su[1]}\nv_add_f32 {su[1]}, {sq[0]}, {sq[1]}")
    for op in ('v_permlane32_swap_b32', 'v_permlane16_swap_b32'):
        P(f"""v_mov_b32 {sq[0]}, {su[0]}
        v_mov_b32 {sq[1]}, {su[1]}
        {op} {su[0]}, {sq[0]}
        {op} {su[1]}, {sq[1]}
        v_pk_add_f32 {su}, {su}, {sq}""")
    P(f"""
    s_lshl_b32 {t0}, {sG}, 3
    s_add_u32 {t0}, {t0}, {sJ}
    s_lshl_b32 {t0}, {t0}, 9
    s_lshl_b32 {t1}, {sW}, 7
    s_add_u32 {t0}, {t0}, {t1}
    s_add_u32 {t0}, {t0}, {STATS}
    v_lshlrev_b32 {vt[0]}, 3, {v0}
    s_mov_b64 exec, 0xffff""")
    tok['x1st'] = P(f"buffer_store_dwordx2 {su}, {vt[0]}, {sWS}, {t0} offen {ST}")
    P("s_mov_b64 exec, -1")
    stamp('x1_stored')
    V.put(vLDo, vSTo, vWq, acc)
    S.put(sSo)
    A.put(aXU, aRing)
    vN = V.get()
    vN2 = V.get()
    vC1 = V.get()
    vSel = V.get(4)
    vCw = V.get()
    P(f"""
    v_and_b32 {vt[0]}, 1, {v0}
    v_lshlrev_b32 {vt[0]}, 5, {vt[0]}
    v_bfe_u32 {vt[1]}, {v0}, 1, 1
    v_lshl_add_u32 {vt[0]}, {vt[1]}, 3, {vt[0]}
    v_and_b32 {vt[1]}, 1, {vHi2}
    v_lshl_add_u32 {vt[0]}, {vt[1]}, 4, {vt[0]}
    v_add_u32 {vt[0]}, {vt[0]}, {vR64}
    v_lshrrev_b32 {vt[2]}, 5, {v0}
    v_lshl_add_u32 {vN}, {vt[2]}, 10, {vt[0]}
    v_lshl_add_u32 {vN2}, {vt[2]}, 9, {vt[0]}
    v_add_u32 {vC1}, {R1}, {vN}
    v_cmp_eq_u32 vcc, {vt[1]}, {vLo4}
    v_mov_b32 {vt[3]}, {sOnes}
    v_cndmask_b32 {vSel[0]}, 0, {vt[3]}, vcc
    v_mov_b32 {vSel[1]}, {vSel[0]}
    v_mov_b32 {vSel[2]}, {vSel[0]}
    v_mov_b32 {vSel[3]}, {vSel[0]}
    v_bfe_u32 {vt[0]}, {v0}, 2, 1
    v_lshlrev_b32 {vt[0]}, 6, {vt[0]}
    v_bfe_u32 {vt[1]}, {v0}, 3, 1
    v_lshl_add_u32 {vt[0]}, {vt[1]}, 4, {vt[0]}
    v_and_b32 {vt[1]}, 3, {v0}
    v_lshl_add_u32 {vCw}, {vt[1]}, 2, {vt[0]}
    v_add_u32 {vCw}, {CS3}, {vCw}
    s_movk_i32 {t0}, 2752
    v_lshl_add_u32 {vt[0]}, {vHi2}, 2, {vt[1]}""".replace(f"v_lshl_add_u32 {vt[0]}, {vHi2}, 2, {vt[1]}", f"v_lshrrev_b32 {vt[0]}, 2, {v0}"))
    P(f"""
    v_mul_u32_u24 {vt[0]}, {t0}, {vt[0]}
    v_lshl_add_u32 {vW3q[0]}, {vt[1]}, 4, {vt[0]}
    v_add_u32 {vW3q[1]}, {16 * 2752 - 1024}, {vW3q[0]}
    v_add_u32 {vW3q[2]}, {2 * (16 * 2752 - 1024)}, {vW3q[0]}
    v_add_u32 {vW3q[3]}, {3 * (16 * 2752 - 1024)}, {vW3q[0]}
    s_mul_i32 {sW3o}, {sW}, {128 * 2752}
    s_min_u32 {t0}, {sC}, 10
    s_lshl_b32 {t0}, {t0}, 6
    s_add_u32 {sW3o}, {sW3o}, {t0}
    s_add_u32 {sW3o}, {sW3o}, 2048""")
    P.wait(tok['x1st'])
    wave_flag(f"""s_lshl_b32 {t0}, {sJ}, 2
    s_add_u32 {t0}, {t0}, {sW}
    s_lshl_b32 {t0}, {t0}, 5
    s_add_u32 {t0}, {t0}, {sG}
    s_lshl_b32 {t0}, {t0}, 2
    s_add_u32 {t0}, {t0}, {FA}""")
    P("s_barrier")
    wg_flag(f"s_lshl_b32 {t0}, {sG2}, 7\ns_lshl_b32 {t1}, {sC}, 2\ns_add_u32 {t0}, {t0}, {t1}\ns_add_u32 {t0}, {t0}, {FX}")
    stamp('x1_flag')
    P(f"s_lshl_b32 {t0}, {sW}, 13\ns_add_u32 m0, {t0}, {R0}\ns_nop 0")
    for i in range(2):
        if i:
            P(f"s_add_u32 m0, m0, 4096\ns_add_u32 {sW3o}, {sW3o}, {64 * 2752}")
        for q in range(4):
            tok['w3b'] = P(f"buffer_load_dwordx4 {vW3q[q]}, {sW3}, {sW3o} offen offset:{q * 1024} lds")
    V.put(vW3q)

    vRing = V.get(32)
    vCa = V.get(4)

    def colsum(addr, kstride, hstride, cw_off, extra):
        toks = {}

        def rd(k):
            r = vRing[4 * (k % 8):4 * (k % 8) + 4]
            P(f"ds_read_b64_tr_b16 {r[0:2]}, {addr} offset:{k * kstride}")
            toks[k] = P(f"ds_read_b64_tr_b16 {r[2:4]}, {addr} offset:{k * kstride + hstride}")
        for k in range(6):
            rd(k)
        for k in range(32):
            if k + 6 < 32:
                rd(k + 6)
            P.wait(toks[k])
            P(f"v_mfma_f32_16x16x32_bf16 {vCa}, {vSel}, {vRing[4 * (k % 8):4 * (k % 8) + 4]}, {'0' if k == 0 else vCa}")
            P.emit(extra.get(k, []))
        P(f"""s_mov_b64 exec, 0xffff
        ds_write_b32 {cw_off}, {vCa[0]}
        ds_write_b32 {cw_off}, {vCa[1]} offset:32
        s_mov_b64 exec, -1""")
    P(f"""
    s_and_b32 {t0}, {sW}, 1
    s_lshl_b32 {t1}, {t0}, 8
    v_add_u32 {vt[0]}, {t1}, {vC1}
    s_lshl_b32 {t1}, {t0}, 7
    v_add_u32 {vt[1]}, {t1}, {vCw}""")
    colsum(vt[0], 2048, 512, vt[1], {})
    stamp('cs01')
    wg_poll(f"s_lshl_b32 {t2}, {sG2}, 7\ns_add_u32 {t2}, {t2}, {FX}", 16)
    P.wait(tok['w3b'])
    P("s_barrier")
    stamp('x1_seen')

    aA = A.get(128)
    vAo, vSo4, vSo4t = V.get(), V.get(), V.get()
    vPs = V.get(8)
    sAo, sH2o, sH2t = S.get(), S.get(), S.get()
    P(f"""
    s_and_b32 {t0}, {sW}, 1
    s_lshl_b32 {t0}, {t0}, 5
    v_and_b32 {vt[0]}, 31, {v0}
    v_add_u32 {vt[0]}, {t0}, {vt[0]}
    v_lshrrev_b32 {vt[1]}, 5, {v0}
    v_lshlrev_b32 {vt[2]}, 4, {vt[0]}
    v_lshl_add_u32 {vAo}, {vt[1]}, 10, {vt[2]}
    v_lshl_add_u32 {vSo4}, {vt[1]}, 11, {vt[2]}
    v_lshlrev_b32 {vt[0]}, 3, {vt[0]}
    v_lshl_add_u32 {vt[0]}, {vt[1]}, 11, {vt[0]}
    s_lshl_b32 {t0}, {sG2}, 1
    s_lshr_b32 {t1}, {sW}, 1
    s_add_u32 {t0}, {t0}, {t1}
    s_lshl_b32 {sAo}, {t0}, 16
    s_add_u32 {sAo}, {sAo}, {X1}
    s_mul_i32 {sH2o}, {t0}, {H2G}
    s_lshl_b32 {t0}, {t0}, 12
    s_add_u32 {t0}, {t0}, {STATS}""")
    for i in range(4):
        tok['ps'] = P(f"buffer_load_dwordx2 {vPs[2 * i:2 * i + 2]}, {vt[0]}, {sWS}, {t0} offen offset:{512 * i} sc1")
    at = {}

    def aload(k):
        def f(p):
            at[k] = p(f"buffer_load_dwordx4 {aA[4 * k:4 * k + 4]}, {vAo}, {sWS}, {sAo} offen offset:{2048 * (k % 2)} sc1")
            if k % 2:
                p(f"s_add_u32 {sAo}, {sAo}, 4096")
        return f
    LA0 = 10
    for k in range(LA0):
        aload(k)(P)
    P(f"""
    s_add_u32 {sH2o}, {sH2o}, {H2}
    s_cmp_lt_u32 {sC}, 11
    s_cselect_b32 {t1}, 0, {WS_BYTES}
    v_add_u32 {vSo4t}, {t1}, {vSo4}
    s_min_u32 {t0}, {sC}, 10
    s_lshl_b32 {t0}, {t0}, 12
    s_add_u32 {sH2t}, {sH2o}, {t0}
    s_add_u32 {sH2t}, {sH2t}, {128 * 1024}
    s_lshl_b32 {t0}, {sC}, 13
    s_add_u32 {sH2o}, {sH2o}, {t0}
    v_add_u32 {vt[1]}, 256, {vCw}""")
    colsum(vN2, 1024, 256, vt[1], {4 * n + 2: [aload(LA0 + n)] for n in range(8)})
    V.put(vSel, vCa, vCw)
    stamp('cs2')
    P.wait(tok['ps'])
    P(f"""
    v_pk_add_f32 {vPs[0:2]}, {vPs[0:2]}, {vPs[2:4]}
    v_pk_add_f32 {vPs[4:6]}, {vPs[4:6]}, {vPs[6:8]}
    v_pk_add_f32 {vPs[0:2]}, {vPs[0:2]}, {vPs[4:6]}
    v_mov_b32 {vPs[2]}, {vPs[0]}
    v_mov_b32 {vPs[3]}, {vPs[1]}
    v_permlane32_swap_b32 {vPs[0]}, {vPs[2]}
    v_permlane32_swap_b32 {vPs[1]}, {vPs[3]}
    v_pk_add_f32 {vPs[0:2]}, {vPs[0:2]}, {vPs[2:4]}
    v_mul_f32 {vPs[0]}, {hx(1 / 512)}, {vPs[0]}
    v_mul_f32 {vPs[1]}, {hx(1 / 512)}, {vPs[1]}
    v_fma_f32 {vPs[1]}, -{vPs[0]}, {vPs[0]}, {vPs[1]}
    v_max_f32 {vPs[1]}, 0, {vPs[1]}
    v_add_f32 {vPs[1]}, {hx(1e-5)}, {vPs[1]}
    v_rsq_f32 {vPs[2]}, {vPs[1]}
    v_sub_f32 {vS0[0]}, 0, {vPs[0]}
    v_mul_f32 {vS1[1]}, {vPs[1]}, {vPs[2]}
    v_mul_f32 {vS1[0]}, {hx(C0)}, {vPs[2]}
    v_mul_f32 {vPs[3]}, {vPs[2]}, {vPs[2]}
    v_mul_f32 {vPs[3]}, {vPs[3]}, {vPs[2]}
    v_mul_f32 {vS0[1]}, {hx(C1)}, {vPs[3]}""")
    V.put(vPs)
    vW4q = V.get(4)
    sW4b, sW4o = S.get(), S.get()
    sWm, sWk = S.get(), S.get()
    P(f"""
    s_and_b32 {sWm}, {sW}, 1
    s_lshr_b32 {sWk}, {sW}, 1
    v_and_b32 {vt[0]}, 1, {vHi2}
    v_xor_b32 {vt[0]}, {sWk}, {vt[0]}
    v_lshlrev_b32 {vt[0]}, 6, {vt[0]}
    v_and_b32 {vt[1]}, 3, {v0}
    v_lshl_add_u32 {vt[0]}, {vt[1]}, 4, {vt[0]}
    v_lshl_add_u32 {vW4q[0]}, {vPat}, 10, {vt[0]}
    v_add_u32 {vW4q[1]}, 7168, {vW4q[0]}
    v_add_u32 {vW4q[2]}, {2 * 7168}, {vW4q[0]}
    v_add_u32 {vW4q[3]}, {3 * 7168}, {vW4q[0]}
    s_mul_i32 {sW4b}, {sWk}, {86 * 8192}
    s_add_u32 {sW4b}, {sW4b}, {sJ128}""")

    def w4dma(sig0, n, ldsbase, half, key):
        L = []
        for i in range(n):
            pre = ''
            if i == 0:
                pre = f"""s_mul_i32 {t0}, {sWk}, {half}
                s_mul_i32 {t1}, {sWm}, {n * 1024}
                s_add_u32 {t0}, {t0}, {t1}
                s_add_u32 m0, {t0}, {ldsbase}
                s_lshl_b32 {t1}, {t1}, 3
                s_add_u32 {sW4o}, {sW4b}, {t1}
                s_add_u32 {sW4o}, {sW4o}, {2 * sig0 * 8192}
                """
            elif i % 4 == 0:
                pre = f"s_add_u32 m0, m0, 4096\ns_add_u32 {sW4o}, {sW4o}, 32768\n"
            L.append(pre + f"buffer_load_dwordx4 {vW4q[i % 4]}, {sW4}, {sW4o} offen offset:{(i % 4) * 1024} lds")
        L.append(lambda p: tok.__setitem__(key, p.vm_tok()))
        return L
    vX1f = V.get(8)

    def x1f(p):
        p(f"""s_lshl_b32 {t0}, {sG}, 16
        s_lshl_b32 {t1}, {sJ}, 13
        s_add_u32 {t0}, {t0}, {t1}
        s_lshl_b32 {t1}, {sWk}, 12
        s_add_u32 {t0}, {t0}, {t1}
        s_add_u32 {t0}, {t0}, {X1}
        buffer_load_dwordx4 {vX1f[0:4]}, {vSo4}, {sWS}, {t0} offen sc1""")
        tok['x1f'] = p(f"buffer_load_dwordx4 {vX1f[4:8]}, {vSo4}, {sWS}, {t0} offen offset:1024 sc1")
    T = V.get(48, 4)
    later = [aload(k) for k in range(LA0 + 8, 32)] + [x1f] + w4dma(0, 8, R0 + 32768, 16384, 'p0a') + w4dma(8, 5, P0B, 10240, 'p0b')
    toks = {}

    def rd1(k):
        r = vRing[8 * (k % 4):8 * (k % 4) + 8]
        for nh in range(2):
            for hf in range(2):
                toks[k] = P(f"ds_read_b64_tr_b16 {r[4 * nh + 2 * hf:4 * nh + 2 * hf + 2]}, {vC1} offset:{k * 2048 + hf * 512 + nh * 256}")
    sFo = S.get()
    for k in range(3):
        rd1(k)
    for k in range(32):
        if k + 3 < 32:
            rd1(k + 3)
        P.wait(toks[k], at[k])
        r = vRing[8 * (k % 4):8 * (k % 4) + 8]
        for nh in range(2):
            P(f"v_mfma_f32_32x32x16_bf16 {T[16 * nh:16 * nh + 16]}, {r[4 * nh:4 * nh + 4]}, {aA[4 * k:4 * k + 4]}, {'0' if k == 0 else T[16 * nh:16 * nh + 16]}")
        if later:
            P.emit([later.pop(0)])
        if k == 28:
            P(f"""s_lshl_b32 {sFo}, {sJ}, 2
            s_lshr_b32 {t0}, {sG}, 3
            s_add_u32 {sFo}, {sFo}, {t0}
            s_lshl_b32 {sFo}, {sFo}, 7
            s_lshl_b32 {t0}, {sWm}, 6
            s_add_u32 {sFo}, {sFo}, {t0}
            s_add_u32 {sFo}, {sFo}, {FA}""")
            poll_issue(sFo, 16)
    P.emit(later)
    stamp('phase1')
    poll_check(sFo, 16, issued=True)
    P.wait(tok['p0b'])
    P("s_barrier")
    stamp('barA')
    vCv = V.get(16)
    vCr = V.get()
    P(f"""
    v_and_b32 {vt[0]}, 1, {vHi2}
    v_lshlrev_b32 {vt[0]}, 6, {vt[0]}
    v_and_b32 {vt[1]}, 3, {v0}
    v_lshl_add_u32 {vt[0]}, {vt[1]}, 4, {vt[0]}
    v_lshl_add_u32 {vt[0]}, {vPat}, 7, {vt[0]}
    v_xor_b32 {vt[1]}, 16, {vt[0]}
    s_lshl_b32 {t0}, {sW}, 11
    s_add_u32 m0, {t0}, {ZA}
    s_sub_u32 {t1}, {sE}, 1
    s_lshl_b32 {t1}, {t1}, 13
    s_add_u32 {t1}, {t1}, {t0}
    s_add_u32 {t1}, {t1}, {AT}
    buffer_load_dwordx4 {vt[0]}, {sWS}, {t1} offen sc1 lds""")
    tok['z'] = P(f"buffer_load_dwordx4 {vt[1]}, {sWS}, {t1} offen offset:1024 sc1 lds")
    P(f"v_lshrrev_b32 {vCr}, 5, {v0}\nv_lshlrev_b32 {vCr}, 6, {vCr}\nv_add_u32 {vCr}, {CS3}, {vCr}")
    aPre = A.get(48)
    vPa = V.get()
    P(f"s_lshl_b32 {t0}, {sWk}, 14\nv_add_u32 {vPa}, {t0}, {vN}")
    pre = [f"ds_read_b64_tr_b16 {aPre[8 * s + 4 * sl + 2 * hf:8 * s + 4 * sl + 2 * hf + 2]}, {vPa} offset:{32768 + s * 2048 + hf * 512 + sl * 256}"
           for s in range(6) for sl in range(2) for hf in range(2)]

    def gelu_sc(a, cs, o, tmp, s0, s1):
        L = []
        for x in range(2):
            L.append([f"v_fmac_f32 {a[x]}, {cs[x]}, {s0[0]}", f"v_mul_f32 {tmp[x]}, {a[x]}, {a[x]}",
                      f"v_fma_f32 {tmp[x]}, {tmp[x]}, {s0[1]}, {s1[0]}", f"v_mul_f32 {tmp[x]}, {tmp[x]}, {a[x]}",
                      f"v_exp_f32 {tmp[x]}, {tmp[x]}", f"v_fma_f32 {tmp[x]}, {tmp[x]}, {s1[1]}, {s1[1]}",
                      f"v_rcp_f32 {tmp[x]}, {tmp[x]}", f"v_mul_f32 {tmp[x]}, {tmp[x]}, {a[x]}"])
        return zip2(L[0], L[1]) + [f"v_cvt_pk_bf16_f32 {o}, {tmp[0]}, {tmp[1]}"]

    def tile_epi(t, packed, soff, inst0, key, voff=None):
        voff = voff or vSo4
        L = []
        cst = {}

        def rdcs(p):
            for i in range(4):
                cst[i] = p(f"ds_read_b128 {vCv[4 * i:4 * i + 4]}, {vCr} offset:{128 * t + 16 * i}")
        L.append(rdcs)
        a = T[16 * t:16 * t + 16]
        for i in range(4):
            L.append(lambda p, i=i: p.wait(cst[i]))
            if packed:
                L += zip2(gelu_pk(a[4 * i:4 * i + 2], vCv[4 * i:4 * i + 2], vO[2 * i], vTmp[0:2], vS0, vS1),
                          gelu_pk(a[4 * i + 2:4 * i + 4], vCv[4 * i + 2:4 * i + 4], vO[2 * i + 1], vTmp[2:4], vS0, vS1))
            else:
                L += gelu_sc(a[4 * i:4 * i + 2], vCv[4 * i:4 * i + 2], vO[2 * i], vTmp[0:2], vS0, vS1)
                L += gelu_sc(a[4 * i + 2:4 * i + 4], vCv[4 * i + 2:4 * i + 4], vO[2 * i + 1], vTmp[2:4], vS0, vS1)
            if i % 2:
                def st(p, i=i):
                    tok[key] = p(f"buffer_store_dwordx4 {vO[4 * (i // 2):4 * (i // 2) + 4]}, {voff}, {sWS}, {soff} offen offset:{inst0 + 1024 * (i // 2)} {ST}")
                L.append(st)
        return L
    pk2 = opt.get('pk2', 0)
    epi = tile_epi(0, pk2, sH2o, 0, 'h2st') + [f"s_add_u32 {sH2o}, {sH2o}, 4096"] + tile_epi(1, pk2, sH2o, 0, 'h2st')
    side = interleave(pre, w4dma(13, 16, R1, 32768, 'p1'))
    toks = {}

    def rd2(k):
        r = vRing[4 * (k % 8):4 * (k % 8) + 4]
        for hf in range(2):
            toks[k] = P(f"ds_read_b64_tr_b16 {r[2 * hf:2 * hf + 2]}, {vN2} offset:{k * 1024 + hf * 256}")
    for k in range(3):
        rd2(k)
    ne, ns = len(epi), len(side)
    de = dn = 0
    for k in range(32):
        if k + 3 < 32:
            rd2(k + 3)
        P.wait(toks[k])
        P(f"v_mfma_f32_32x32x16_bf16 {T[32:48]}, {vRing[4 * (k % 8):4 * (k % 8) + 4]}, {aA[4 * k:4 * k + 4]}, {'0' if k == 0 else T[32:48]}")
        we, wn = ne * (k + 1) // 32, ns * (k + 1) // 32
        P.emit(side[dn:wn])
        P.emit(epi[de:we])
        de, dn = we, wn
    stamp('phase2')
    P.wait(tok['z'], P.lg_tok())
    P("s_barrier")
    stamp('barB')
    A.put(aA)
    aZ = A.get(32)
    P(f"v_add_u32 {vt[0]}, {ZA}, {vZp}\nv_xor_b32 {vt[1]}, 16, {vt[0]}")
    zr = [f"ds_read_b64_tr_b16 {aZ[16 * pt + 4 * b + 2 * hf:16 * pt + 4 * b + 2 * hf + 2]}, {vt[b & 1]} offset:{pt * 4096 + hf * 512 + (b >> 1) * 256}"
          for b in range(4) for pt in range(2) for hf in range(2)]
    e2 = tile_epi(2, 1, sH2t, 0, 'h2st', vSo4t)
    P.emit(e2[:2] + interleave(e2[2:], zr[:8], lead=4) + zr[8:])
    tok['zr'] = P.lg_tok()
    stamp('h2_stored')
    V.put(vCv, vCr, vN2, vC1, vZp)
    P.emit(w4dma(29, 8, R0, 16384, 'p2') + w4dma(37, 6, R0 + 32768, 16384, 'p3'))

    U = T[0:32]
    P.wait(tok['zr'])
    for b in range(4):
        zr_, zi_ = aZ[4 * b:4 * b + 4], aZ[16 + 4 * b:16 + 4 * b + 4]
        ur, ui = U[8 * b:8 * b + 4], U[8 * b + 4:8 * b + 8]
        P(f"""v_mfma_f32_16x16x32_bf16 {ur}, {zr_}, {aF32[0:4]}, 0
        v_mfma_f32_16x16x32_bf16 {ui}, {zi_}, {aF32[8:12]}, 0
        v_mfma_f32_16x16x32_bf16 {ur}, {zi_}, {aF32[4:8]}, {ur}
        v_mfma_f32_16x16x32_bf16 {ui}, {zr_}, {aF32[12:16]}, {ui}""")
    vV = vRing[0:16]
    for b in range(4):
        for h in range(2):
            ur, ui = U[8 * b + 2 * h:8 * b + 2 * h + 2], U[8 * b + 4 + 2 * h:8 * b + 6 + 2 * h]
            c, s = vTW[4 * b + 2 * h:4 * b + 2 * h + 2], vTW[16 + 4 * b + 2 * h:16 + 4 * b + 2 * h + 2]
            x, y = vTmp[0:2], vTmp[2:4]
            P(f"""v_pk_mul_f32 {x}, {ur}, {c}
            v_pk_mul_f32 {y}, {ui}, {c}
            v_pk_fma_f32 {x}, {ui}, {s}, {x}
            v_pk_fma_f32 {y}, {ur}, {s}, {y} neg_lo:[0,1,0] neg_hi:[0,1,0]
            v_cvt_pk_bf16_f32 {vV[4 * b + h]}, {x[0]}, {x[1]}
            v_cvt_pk_bf16_f32 {vV[4 * b + 2 + h]}, {y[0]}, {y[1]}""")
    P.wait(tok['h2st'])
    P("s_barrier")
    wg_flag(f"s_lshl_b32 {t0}, {sG2}, 7\ns_lshl_b32 {t1}, {sC}, 2\ns_add_u32 {t0}, {t0}, {t1}\ns_add_u32 {t0}, {t0}, {FH2}")
    stamp('h2_flag')
    Y = T[32:48]
    for b in range(4):
        for tau in range(4):
            y = Y[4 * tau:4 * tau + 4]
            P(f"v_mfma_f32_16x16x32_bf16 {y}, {vV[4 * b:4 * b + 4]}, {aF64[16 * b + 4 * tau:16 * b + 4 * tau + 4]}, {'0' if b == 0 else y}")
    sRow, sMask = S.get(), S.get()
    P(f"""
    s_sub_u32 {t0}, 512, {sE}
    s_cmp_eq_u32 {sE}, 256
    s_cselect_b32 {t0}, 0, {t0}
    s_cselect_b32 {t1}, 0, -1
    s_cmp_eq_u32 {sWk}, 0
    s_cselect_b32 {sRow}, {sE}, {t0}
    s_cselect_b32 {sMask}, -1, {t1}
    s_movk_i32 {t0}, 80
    v_mul_u32_u24 {vt[0]}, {t0}, {vLo4}
    v_lshl_add_u32 {vt[0]}, {vHi2}, 3, {vt[0]}
    s_mul_i32 {t1}, {sWk}, 5120
    s_add_u32 {t1}, {t1}, {ZA}
    s_lshl_b32 {t2}, {sWm}, 5
    s_add_u32 {t2}, {t2}, {t1}
    v_add_u32 {vt[0]}, {t2}, {vt[0]}
    v_lshrrev_b32 {vt[1]}, 2, {v0}
    v_mul_u32_u24 {vt[1]}, {t0}, {vt[1]}
    v_and_b32 {vt[2]}, 3, {v0}
    v_lshl_add_u32 {vt[1]}, {vt[2]}, 4, {vt[1]}
    s_mul_i32 {t2}, {sWm}, 2560
    s_add_u32 {t2}, {t2}, {t1}
    v_add_u32 {vt[1]}, {t2}, {vt[1]}""")
    for tau in range(4):
        for h in range(2):
            P(f"v_cvt_pk_bf16_f32 {vO[2 * tau + h]}, {Y[4 * tau + 2 * h]}, {Y[4 * tau + 2 * h + 1]}")
        for h in range(2):
            P(f"v_and_b32 {vO[2 * tau + h]}, {sMask}, {vO[2 * tau + h]}")
        P(f"ds_write_b64 {vt[0]}, {vO[2 * tau:2 * tau + 2]} offset:{1280 * tau}")
    P(f"""
    s_lshl_b32 {t0}, {sRow}, 12
    s_lshl_b32 {t1}, {sWm}, 11
    s_add_u32 {t0}, {t0}, {t1}
    s_add_u32 {t0}, {t0}, {YT}
    s_waitcnt lgkmcnt(0)
    s_barrier""")
    y0 = P(f"ds_read_b128 {vO[0:4]}, {vt[1]}")
    y1 = P(f"ds_read_b128 {vO[4:8]}, {vt[1]} offset:1280")
    P.wait(y0)
    P(f"buffer_store_dwordx4 {vO[0:4]}, {vL16}, {sWS}, {t0} offen sc1")
    P.wait(y1)
    tok['yst'] = P(f"buffer_store_dwordx4 {vO[4:8]}, {vL16}, {sWS}, {t0} offen offset:1024 sc1")
    A.put(aZ, aF32, aF64)
    V.put(vTW)
    stamp('fft_done')
    a0r, a1r = T[0:16], T[16:32]
    P.wait(tok['x1f'])
    for d in range(8):
        P(f"v_lshlrev_b32 {a0r[2 * d]}, 16, {vX1f[d]}\nv_and_b32 {a0r[2 * d + 1]}, 0xffff0000, {vX1f[d]}")
    V.put(vX1f)
    vPb, vPc = V.get(), V.get()
    P(f"""
    s_mul_i32 {t0}, {sWk}, 10240
    s_add_u32 {t0}, {t0}, {P0B}
    v_add_u32 {vPb}, {t0}, {vN}
    s_lshl_b32 {t0}, {sWk}, 15
    s_add_u32 {t0}, {t0}, {R1}
    v_add_u32 {vPc}, {t0}, {vN}
    s_mul_i32 {sAo}, {sG}, {H2G}
    s_mul_i32 {t0}, {sWk}, {43 * 2048}
    s_add_u32 {sAo}, {sAo}, {t0}
    s_add_u32 {sAo}, {sAo}, {H2}""")
    wg_poll(f"s_lshl_b32 {t2}, {sG2}, 7\ns_add_u32 {t2}, {t2}, {FH2}", 16)
    P.wait(tok['p3'])
    P("s_barrier")
    stamp('h2_seen')

    aB = A.get(172)
    bt = {}

    def bload(s):
        bt[s] = P(f"buffer_load_dwordx4 {aB[4 * s:4 * s + 4]}, {vAo}, {sWS}, {sAo} offen offset:{2048 * (s % 2)} sc1")
        if s % 2:
            P(f"s_add_u32 {sAo}, {sAo}, 4096")
    LB = opt.get('lb', 12)
    for s in range(LB):
        bload(s)
    toks = {}

    def w4addr(s):
        if s < 8:
            return vPa, 32768 + s * 2048
        if s < 13:
            return vPb, (s - 8) * 2048
        if s < 29:
            return vPc, (s - 13) * 2048
        if s < 37:
            return vPa, (s - 29) * 2048
        return vPa, 32768 + (s - 37) * 2048

    def rd4(s):
        r = vRing[8 * (s % 4):8 * (s % 4) + 8]
        ad, off = w4addr(s)
        for sl in range(2):
            for hf in range(2):
                toks[s] = P(f"ds_read_b64_tr_b16 {r[4 * sl + 2 * hf:4 * sl + 2 * hf + 2]}, {ad} offset:{off + hf * 512 + sl * 256}")
    vXf32 = V.get(16)
    unp = []
    for d in range(8):
        unp += [f"v_lshlrev_b32 {vXf32[2 * d]}, 16, {vXF[d]}", f"v_and_b32 {vXf32[2 * d + 1]}, 0xffff0000, {vXF[d]}"]
    P.emit(unp)
    V.put(vXF)
    YS = opt.get('ys', 20)
    for s in range(43):
        if s + LB < 43:
            bload(s + LB)
        if 6 <= s + 3 < 43:
            rd4(s + 3)
        P.wait(bt[s], toks.get(s))
        r = aPre[8 * s:8 * s + 8] if s < 6 else vRing[8 * (s % 4):8 * (s % 4) + 8]
        P(f"v_mfma_f32_32x32x16_bf16 {a0r}, {r[0:4]}, {aB[4 * s:4 * s + 4]}, {a0r}")
        P(f"v_mfma_f32_32x32x16_bf16 {a1r}, {r[4:8]}, {aB[4 * s:4 * s + 4]}, {'0' if s == 0 else a1r}")
        if s == 0:
            stamp('g4_first')
            wave_flag(f"s_lshl_b32 {t0}, {sWm}, 9\ns_add_u32 {t0}, {t0}, {sRow}\ns_lshl_b32 {t0}, {t0}, 2\ns_add_u32 {t0}, {t0}, {FY}")
        if s == YS - 6:
            P(f"""s_lshr_b32 {sFo}, {sG}, 4
            s_lshl_b32 {sFo}, {sFo}, 11
            s_lshl_b32 {t0}, {sJ}, 8
            s_add_u32 {sFo}, {sFo}, {t0}
            s_lshl_b32 {t0}, {sW}, 6
            s_add_u32 {sFo}, {sFo}, {t0}
            s_add_u32 {sFo}, {sFo}, {FY}""")
            poll_issue(sFo, 16)
        if s == YS:
            poll_check(sFo, 16, issued=True)
            P(f"""s_barrier
            v_and_b32 {vt[0]}, 1, {vHi2}
            v_lshlrev_b32 {vt[0]}, 6, {vt[0]}
            v_and_b32 {vt[1]}, 3, {v0}
            v_lshl_add_u32 {vt[0]}, {vt[1]}, 4, {vt[0]}
            v_lshl_add_u32 {vt[0]}, {vPat}, 12, {vt[0]}
            v_add_u32 {vt[1]}, {32768 - 1024}, {vt[0]}
            s_lshl_b32 {t0}, {sW}, 11
            s_add_u32 m0, {t0}, {ZA}
            s_lshl_b32 {t0}, {sJ}, 18
            s_lshl_b32 {t1}, {sW}, 16
            s_add_u32 {t0}, {t0}, {t1}
            s_lshl_b32 {t1}, {sG}, 7
            s_add_u32 {t0}, {t0}, {t1}
            s_add_u32 {t0}, {t0}, {YT}
            buffer_load_dwordx4 {vt[0]}, {sWS}, {t0} offen sc1 lds""")
            tok['yt'] = P(f"buffer_load_dwordx4 {vt[1]}, {sWS}, {t0} offen offset:1024 sc1 lds")
            stamp('y_seen')
    stamp('gemm4')
    P(f"""
    s_lshl_b32 {t0}, {sW}, 12
    s_add_u32 {t0}, {t0}, {RED}
    v_add_u32 {vt[0]}, {t0}, {vL16}
    v_xor_b32 {vt[1]}, 8192, {vt[0]}
    v_lshrrev_b32 {vt[2]}, 5, {v0}
    v_lshlrev_b32 {vt[3]}, 11, {vt[2]}
    v_add_u32 {vt[3]}, {vt[3]}, {vR64}
    v_and_b32 {vt[4]}, 1, {vHi2}
    v_lshl_add_u32 {vt[3]}, {vt[4]}, 5, {vt[3]}
    v_and_b32 {vt[4]}, 3, {v0}
    v_lshl_add_u32 {vt[3]}, {vt[4]}, 3, {vt[3]}
    s_lshl_b32 {t0}, {sWk}, 12
    s_lshl_b32 {t1}, {sWm}, 8
    s_add_u32 {t0}, {t0}, {t1}
    s_add_u32 {t0}, {t0}, {ZA}
    v_add_u32 {vt[3]}, {t0}, {vt[3]}""")
    for i in range(4):
        P(f"ds_write_b128 {vt[0]}, {a1r[4 * i:4 * i + 4]} offset:{1024 * i}")
    P(f"""
    v_and_b32 {vt[4]}, 31, {v0}
    v_lshlrev_b32 {vt[4]}, 10, {vt[4]}
    v_lshl_add_u32 {vt[4]}, {vt[2]}, 5, {vt[4]}
    s_lshl_b32 {t0}, {sG}, 1
    s_add_u32 {t0}, {t0}, {sWm}
    s_lshl_b32 {t0}, {t0}, 15
    s_lshl_b32 {t1}, {sWk}, 6
    s_add_u32 {t0}, {t0}, {t1}
    s_add_u32 {t0}, {t0}, {sJ128}""")
    P.wait(tok['yt'], P.lg_tok())
    P("s_barrier")
    stamp('barD')
    pr = T[32:48]
    vY = vRing[0:8]
    vSf = vRing[8:24]
    rt = []
    for i in range(4):
        P(f"ds_read_b128 {pr[4 * i:4 * i + 4]}, {vt[1]} offset:{1024 * i}")
        rt.append(P(f"ds_read_b64_tr_b16 {vY[2 * i:2 * i + 2]}, {vt[3]} offset:{(i >> 1) * 1024 + (i & 1) * 512}"))
    vNl = vS0
    P(f"v_mov_b32 {vNl[0]}, {hx(-math.log2(math.e))}")
    for i in range(4):
        P.wait(rt[i])
        seqs = []
        for h in range(2):
            d = 2 * i + h
            a, p_, tmp, sf, xf = a0r[2 * d:2 * d + 2], pr[2 * d:2 * d + 2], vTmp[2 * h:2 * h + 2], vSf[2 * d:2 * d + 2], vXf32[2 * d:2 * d + 2]
            seqs.append([f"v_pk_add_f32 {a}, {a}, {p_}",
                         f"v_lshlrev_b32 {sf[0]}, 16, {vY[d]}",
                         f"v_pk_mul_f32 {tmp}, {a}, {vNl} op_sel_hi:[1,0]",
                         f"v_and_b32 {sf[1]}, 0xffff0000, {vY[d]}",
                         f"v_exp_f32 {tmp[0]}, {tmp[0]}", f"v_exp_f32 {tmp[1]}, {tmp[1]}",
                         f"v_pk_mul_f32 {a}, {a}, {sf}",
                         f"v_pk_add_f32 {tmp}, {tmp}, 1.0 op_sel_hi:[1,0]",
                         f"v_rcp_f32 {tmp[0]}, {tmp[0]}", f"v_rcp_f32 {tmp[1]}, {tmp[1]}",
                         f"v_pk_fma_f32 {a}, {a}, {tmp}, {xf}",
                         f"v_cvt_pk_bf16_f32 {vO[d]}, {a[0]}, {a[1]}"])
        P.emit(zip2(*seqs))
        if i % 2:
            P(f"buffer_store_dwordx4 {vO[4 * (i // 2):4 * (i // 2) + 4]}, {vt[4]}, {sOUT}, {t0} offen offset:{16 * (i // 2)} {['', 'sc1', 'nt', 'sc0 sc1', 'sc1 nt'][opt.get('outst', 0)]}")
    stamp('out_stored')

    le = P.label('L_noepoch')
    lp, lq = P.label('L_ep'), P.label('L_epd')
    P(f"""
    s_add_u32 {t0}, s2, {sW}
    s_cmp_lg_u32 {t0}, 0
    s_cbranch_scc1 {le}
    v_lshrrev_b32 {vt[0]}, 5, {v0}
    v_lshlrev_b32 {vt[0]}, 9, {vt[0]}
    v_and_b32 {vt[1]}, 31, {v0}
    v_lshl_add_u32 {vt[0]}, {vt[1]}, 2, {vt[0]}
    s_mov_b32 {t1}, {FA}
    s_mov_b32 {sNZ}, {SPIN}
    {lp}:""")
    for i in range(4):
        P(f"buffer_load_dword {vt[2 + i]}, {vt[0]}, {sWS}, {t1} offen offset:{1024 * i} sc1", optional=True)
    P("s_waitcnt vmcnt(0)")
    for i in range(4):
        P(f"v_xor_b32 {vt[2 + i]}, {sNN[0]}, {vt[2 + i]}")
    P(f"""
    v_or_b32 {vt[2]}, {vt[2]}, {vt[3]}
    v_or3_b32 {vt[2]}, {vt[2]}, {vt[4]}, {vt[5]}
    v_cmp_ne_u32 vcc, 0, {vt[2]}
    s_cbranch_vccz {lq}
    s_sub_u32 {sNZ}, {sNZ}, 1
    s_cbranch_scc0 {lp}
    {lq}:
    v_mov_b32 {vt[0]}, {E_OFF}
    v_mov_b32 {vt[1]}, {sNN[0]}
    s_mov_b64 exec, 1""")
    P(f"buffer_store_dword {vt[1]}, {vt[0]}, {sWS}, 0 offen sc1", optional=True)
    P(f"s_mov_b64 exec, -1\n{le}:")
    if stamps:
        P("s_waitcnt vmcnt(0)")
        prof.append('end')
        stamp('end')
        P("s_waitcnt lgkmcnt(0)")
        n = len(stamps)
        for i in range(max(0, n - 3), n):
            P(f"v_writelane_b32 {vStamp}, {sSt[2 * (i % 4)]}, {i}")
        P(f"""s_lshl_b32 {t0}, s2, 2
        s_add_u32 {t0}, {t0}, {sW}
        s_lshl_b32 {t0}, {t0}, 8
        s_add_u32 {t0}, {t0}, {TS}
        v_lshlrev_b32 {vt[0]}, 2, {v0}
        buffer_store_dword {vStamp}, {vt[0]}, {sWS}, {t0} offen""")
        if opt.get('dbg') is not None:
            ld = P.label('L_dbg')
            P(f"""s_lshl_b32 {t0}, s2, 2
            s_add_u32 {t0}, {t0}, {sW}
            s_cmp_lg_u32 {t0}, {4 * opt['dbg']}
            s_cbranch_scc1 {ld}
            s_load_dwordx2 {sX[0:2]}, s[0:1], 88
            v_readfirstlane_b32 {t1}, {vStamp}
            s_mov_b32 {sX[2]}, 256
            s_waitcnt lgkmcnt(0)
            v_subrev_u32 {vStamp}, {t1}, {vStamp}
            buffer_store_dword {vStamp}, {vt[0]}, {sX}, 0 offen
            {ld}:""")
    if opt.get('padto'):
        P(f"""s_waitcnt vmcnt(0) lgkmcnt(0)
        L_pad:
        s_memrealtime {sPad[2:4]}
        s_waitcnt lgkmcnt(0)
        s_sub_u32 {t0}, {sPad[2]}, {sPad[0]}
        s_cmp_lt_u32 {t0}, {opt['padto']}
        s_cbranch_scc1 L_pad""")
    P("L_end:\ns_endpgm")

    errs = P.check_waits()
    npad = P.pad_hazards()
    info = dict(vgpr=V.hi, agpr=A.hi, sgpr=S.hi, npad=npad, nins=len(P.ins), errs=errs, stamps=[n for n, _ in stamps])
    return P, info


HEADER = """; Fused FNet Fourier mixing + spatial-shift / channel MLP, one persistent launch.
; 256 workgroups (one per CU), 4 waves each.  Generated by work/gen.py (hand-written instruction streams).
; @launch grid=(256,1,1) block=(256,1,1) lds=%d
""" % LDS_BYTES


def file_text(P):
    return (HEADER + '.amdgcn_target "amdgcn-amd-amdhsa--gfx950"\n.text\n' +
            f".globl {KNAME}\n.p2align 8\n.type {KNAME},@function\n{KNAME}:\n" + P.text() +
            f""".section .rodata,"a"
.p2align 6
.amdhsa_kernel {KNAME}
  .amdhsa_next_free_vgpr 512
  .amdhsa_next_free_sgpr 102
  .amdhsa_accum_offset 256
  .amdhsa_group_segment_fixed_size 0
  .amdhsa_kernarg_size 104
  .amdhsa_user_sgpr_count 2
  .amdhsa_user_sgpr_kernarg_segment_ptr 1
  .amdhsa_system_sgpr_workgroup_id_x 1
.end_amdhsa_kernel
""")


if __name__ == '__main__':
    out = sys.argv[1]
    opt = {}
    for a in sys.argv[2:]:
        k, v = a.split('=')
        opt[k] = v.split(',') if k == 'prof' else int(v)
    P, info = build(opt)
    open(out, 'w').write(file_text(P))
    open(out[:-2] + '.txt', 'w').write('\n'.join(info['stamps']))
    for e in info['errs']:
        print('WAIT-ERR', e)
    print({k: v for k, v in info.items() if k != 'errs'})
```
